```python
import torch

def _softmax(x, axis=-1):
    return torch.softmax(x, dim=axis)
def _gelu(x):
    return torch.nn.functional.gelu(x, approximate="tanh")
def _silu(x):
    return torch.nn.functional.silu(x)
def _sigmoid(x):
    return torch.sigmoid(x)
def _layernorm(x, axis=-1, eps=1e-5):
    m = x.mean(dim=axis, keepdim=True)
    v = x.var(dim=axis, keepdim=True, unbiased=False)
    return (x - m) / torch.sqrt(v + eps)
def _scatter_add(tgt, idx, src, axis=0):
    return tgt.clone().index_add_(axis, idx, src)
def _segment_sum(src, seg, n):
    out = torch.zeros((n,) + src.shape[1:], dtype=src.dtype)
    return out.index_add_(0, seg, src)
def _pad(x, pw):
    flat = tuple(v for pair in reversed(pw) for v in pair)
    return torch.nn.functional.pad(x, flat)

kernel_name = 'recurrent_scan__gqa_block_cached__glu_gated_glu__prompt'

def setup_inputs():

    _w = (lambda a: (lambda t: t.to(torch.bfloat16) if t.is_floating_point() else t)(torch.as_tensor(a)))
    def _A_setup():
        B, Sq, D = 1, 2048, 512
        Hq, Hkv, Sk, Dh = 32, 8, 2048, 128
        assert Hq % Hkv == 0, (Hq, Hkv)
        return {
            "x": _w((lambda *s: torch.randn(*s, dtype=torch.bfloat16) * 0.05)(B, Sq, D)),
            "k_cache": _w((lambda *s: torch.randn(*s, dtype=torch.bfloat16) * 1.6)(B, Hkv, Sk, Dh)),
            "v_cache": _w((lambda *s: torch.randn(*s, dtype=torch.bfloat16) * 0.2)(B, Hkv, Sk, Dh)),
            "wq": _w((lambda *s: torch.randn(*s, dtype=torch.bfloat16) * 1.6)(D, Hq * Dh) * (D ** -0.5)),
            "wo": _w((lambda *s: torch.randn(*s, dtype=torch.bfloat16) * 0.2)(Hq * Dh, D) * ((Hq * Dh) ** -0.5)),
        }
    _A_in = _A_setup()

    def _B_setup():
        B, S, D, F = 1, 2048, 512, 1792
        return {
            "x": _w((lambda *s: torch.randn(*s, dtype=torch.bfloat16) * 0.05)(B, S, D)),
            "w_gate": _w((lambda *s: torch.randn(*s, dtype=torch.bfloat16) * 0.2)(D, F)),
            "w_up": _w((lambda *s: torch.randn(*s, dtype=torch.bfloat16) * 0.1)(D, F)),
            "w_down": _w((lambda *s: torch.randn(*s, dtype=torch.bfloat16) * 0.1)(F, D)),
        }
    _B_in = _B_setup()

    return {
        "A_x": _A_in["x"],
        "A_k_cache": _A_in["k_cache"],
        "A_v_cache": _A_in["v_cache"],
        "A_wq": _A_in["wq"],
        "A_wo": _A_in["wo"],
        "B_x": _B_in["x"],
        "B_w_gate": _B_in["w_gate"],
        "B_w_up": _B_in["w_up"],
        "B_w_down": _B_in["w_down"],
    }

def reference(A_x, A_k_cache, A_v_cache, A_wq, A_wo, B_x, B_w_gate, B_w_up, B_w_down):
    def _A_ref(x, k_cache, v_cache, wq, wo):
        B, Sq, D = x.shape
        Hq, Dh = 32, 128
        Hkv = k_cache.shape[1]
        rep = Hq // Hkv
        q = (lambda x, *d: x.permute(*d))((x @ wq).reshape(B, Sq, Hq, Dh), 0, 2, 1, 3)
        k = (lambda x, n, axis: torch.repeat_interleave(x, n, dim=axis))(k_cache, rep, axis=1)
        v = (lambda x, n, axis: torch.repeat_interleave(x, n, dim=axis))(v_cache, rep, axis=1)
        scores = torch.einsum("bhqd,bhkd->bhqk", q, k) * (Dh ** -0.5)
        p = _softmax(scores, axis=-1)
        o = torch.einsum("bhqk,bhkd->bhqd", p, v)
        return (lambda x, *d: x.permute(*d))(o, 0, 2, 1, 3).reshape(B, Sq, Hq * Dh) @ wo

    def _B_ref(x, w_gate, w_up, w_down):
        g = torch.einsum("bsd,df->bsf", x, w_gate)
        u = torch.einsum("bsd,df->bsf", x, w_up)
        h = _sigmoid(g) * u
        return torch.einsum("bsf,fd->bsd", h, w_down)

    x = A_x
    xn = _layernorm(x, axis=-1)
    s = _A_ref(xn, A_k_cache, A_v_cache, A_wq, A_wo)
    g = _silu(_B_ref(xn, B_w_gate, B_w_up, B_w_down))
    return x + s * g
```

```python
import re

TRANS = ('v_exp_f32', 'v_rcp_f32', 'v_rsq_f32', 'v_log_f32', 'v_sqrt_f32')
_REG = re.compile(r'^(-?)(?:abs\()?([vas])(?:(\d+)|\[(\d+):(\d+)\])\)?$')


def regs_of(op):
    op = op.strip().split(' ')[0]
    if op in ('vcc', 'exec', 'm0', 'scc'):
        return {op}
    m = _REG.match(op)
    if not m:
        return set()
    k = m.group(2)
    if m.group(3) is not None:
        return {k + m.group(3)}
    return {k + str(i) for i in range(int(m.group(4)), int(m.group(5)) + 1)}


class I:
    def __init__(self, text, lds_r=None, lds_w=None, tag=None):
        self.text = text
        self.lds_r, self.lds_w, self.tag = lds_r, lds_w, tag
        t = text.split(';')[0].strip()
        self.op = t.split()[0] if t else ''
        rest = t[len(self.op):].strip()
        parts = [p.strip() for p in rest.split(',')] if rest else []
        self.mods = ''
        if parts:
            last = parts[-1].split(None, 1)
            if len(last) > 1 and not self.op.startswith('s_waitcnt'):
                parts[-1], self.mods = last[0], last[1]
        fixed = []
        for p in parts:
            if fixed and fixed[-1].count('[') > fixed[-1].count(']'):
                fixed[-1] += ',' + p
            else:
                fixed.append(p)
        self.ops = fixed
        self.classify()

    def classify(self):
        op, o = self.op, self.ops
        R = lambda i: regs_of(o[i]) if i < len(o) else set()
        self.kind, self.w, self.r = 'other', set(), set()
        self.dpp = '_dpp' in op
        if op.endswith(':') or op.startswith('.') or op == '':
            self.kind = 'pseudo'
        elif op.startswith('v_mfma'):
            self.kind = 'mfma'
            self.w, self.A, self.B, self.C = R(0), R(1), R(2), R(3)
            self.r = self.A | self.B | self.C
        elif op.startswith('v_'):
            self.kind = 'trans' if op.replace('_e32', '').replace('_e64', '') in TRANS else 'valu'
            self.w = R(0)
            for i in range(1, len(o)):
                self.r |= R(i)
            if 'op_sel_hi:[1,0]' in self.text and len(o) > 2:
                lo = sorted(R(2), key=lambda x: int(x[1:]))
                if len(lo) == 2:
                    self.r = R(1) | {lo[0]}
            if op.startswith('v_permlane'):
                self.w = R(0) | R(1)
                self.r = R(0) | R(1)
            if op.startswith('v_fmac') or op.startswith('v_writelane'):
                self.r |= R(0)
            if op.startswith('v_cndmask') and len(o) == 3:
                self.r |= {'vcc'}
        elif op.startswith('ds_read'):
            self.kind = 'ds'
            self.w, self.r = R(0), R(1)
        elif op.startswith('ds_write'):
            self.kind = 'ds'
            self.r = R(0) | R(1)
        elif op.startswith('buffer_load'):
            self.kind = 'vmem'
            if re.search(r'\blds\b', self.mods):
                self.r = R(0) | R(1) | R(2) | {'m0'}
                self.dma = True
            else:
                self.w = R(0)
                self.r = R(1) | R(2) | R(3)
        elif op.startswith('buffer_store') or op.startswith('buffer_atomic'):
            self.kind = 'vmem'
            self.r = R(0) | R(1) | R(2) | R(3)
            self.data = R(0)
            self.wide = 'x4' in op or 'x3' in op
            if op.startswith('buffer_atomic') and 'sc0' in self.mods:
                self.w = R(0)
        elif op.startswith('s_load') or op.startswith('s_mem'):
            self.kind = 'smem'
            self.w = R(0)
            self.r = R(1)
        elif op == 's_waitcnt':
            self.kind = 'wait'
            m = re.search(r'vmcnt\((\d+)\)', self.text)
            self.vm = int(m.group(1)) if m else None
            m = re.search(r'lgkmcnt\((\d+)\)', self.text)
            self.lgkm = int(m.group(1)) if m else None
        elif op == 's_nop':
            self.kind = 'nop'
            self.n = int(o[0]) + 1
        elif op == 's_barrier':
            self.kind = 'barrier'
        elif op.startswith('s_cbranch') or op in ('s_branch', 's_endpgm', 's_sleep', 's_setprio'):
            self.kind = 'ctrl'
        elif op.startswith('s_cmp') or op.startswith('s_bitcmp'):
            self.kind = 'salu'
            self.r = R(0) | R(1)
        elif op.startswith('s_'):
            self.kind = 'salu'
            self.w = R(0)
            for i in range(1, len(o)):
                self.r |= R(i)
            if 'saveexec' in op:
                self.w |= {'exec'}
        else:
            raise ValueError('unclassified: ' + self.text)

    @property
    def cost(self):
        if self.kind == 'pseudo':
            return 0
        if self.kind in ('trans', 'mfma'):
            return 8
        if self.kind == 'nop':
            return 4 * self.n
        return 4


class Prog:
    def __init__(self):
        self.items = []

    def e(self, text, **kw):
        for line in text.strip().split('\n'):
            line = line.strip()
            if line:
                self.items.append(I(line, **kw))

    def add(self, ins):
        if isinstance(ins, (list, tuple)):
            for x in ins:
                self.add(x)
        elif isinstance(ins, str):
            self.e(ins)
        else:
            self.items.append(ins)

    def mark(self, *m):
        self.items.append(m)

    def text(self):
        out = []
        for it in self.items:
            if isinstance(it, I):
                out.append(it.text if it.kind == 'pseudo' else ' ' + it.text)
        return '\n'.join(out) + '\n'

    def trace(self):
        def expand(items):
            out, i = [], 0
            while i < len(items):
                it = items[i]
                if isinstance(it, tuple) and it[0] == 'loop':
                    j = i + 1
                    while not (isinstance(items[j], tuple) and items[j][0] == 'endloop'):
                        j += 1
                    body = items[i + 1:j]
                    for t in range(it[1]):
                        on = True
                        for b in body:
                            if isinstance(b, tuple) and b[0] == 'trip':
                                on = (b[1] == t)
                            elif isinstance(b, tuple) and b[0] == 'endtrip':
                                on = True
                            elif on:
                                out.append((b, t) if isinstance(b, I) else b)
                    i = j + 1
                elif isinstance(it, tuple) and it[0] == 'off':
                    while not (isinstance(items[i], tuple) and items[i][0] == 'on'):
                        i += 1
                    i += 1
                else:
                    out.append((it, 0) if isinstance(it, I) else it)
                    i += 1
            return out
        return expand(self.items)


def fill(mfmas, fixed, background=(), bg_start=0, bg_end=None, budget=8):
    n = len(mfmas)
    bg_end = n if bg_end is None else bg_end
    gaps = [list(fixed.get(g, [])) for g in range(n)]
    used = [sum(x.cost for x in g) for g in gaps]
    bg = list(background)
    total = sum(x.cost for x in bg)
    span = max(bg_end - bg_start, 1)
    done, k = 0, 0
    for g in range(bg_start, bg_end):
        target = total * (g - bg_start + 1) / span
        while k < len(bg):
            c = bg[k].cost
            fits = used[g] + c <= budget
            behind = done + c <= target - 24
            ahead = done > target + 16
            if (fits and not ahead) or (behind and used[g] <= budget):
                gaps[g].append(bg[k])
                used[g] += c
                done += c
                k += 1
            else:
                break
    while k < len(bg):
        gaps[bg_end - 1].append(bg[k])
        k += 1
    out = []
    for m, g in zip(mfmas, gaps):
        out.append(m)
        out.extend(g)
    return out


def cycles(trace):
    total, gap = 0, None
    marks = []
    for it in trace:
        if not (isinstance(it, tuple) and isinstance(it[0], I)):
            if it[0] == 'phase':
                if gap is not None:
                    total += max(16, gap)
                    gap = None
                marks.append((it[1], total))
            continue
        ins = it[0]
        if ins.kind == 'mfma':
            if gap is not None:
                total += max(16, gap)
            gap = 8
        elif gap is not None:
            gap += ins.cost
        else:
            total += ins.cost
    if gap is not None:
        total += max(16, gap)
    marks.append(('end', total))
    return marks


def check(trace, nwaves=4, verbose=True):
    errs = []
    seq = [(x[0], x[1]) for x in trace if isinstance(x, tuple) and isinstance(x[0], I) and x[0].kind != 'pseudo']
    pos = []
    p = 0
    for ins, _ in seq:
        pos.append(p)
        p += ins.n if ins.kind == 'nop' else 1

    def err(i, msg):
        errs.append('[%d] %s  <- %s' % (i, seq[i][0].text, msg))

    last_valu_w, last_trans_w, last_mfma_w, last_mfma_c, last_salu_w, last_store = {}, {}, {}, {}, {}, {}
    pend = {}
    vmq, lgq = [], []
    done_at = {}
    barriers = []
    for i, (ins, trip) in enumerate(seq):
        dist = lambda j: pos[i] - pos[j] - (seq[j][0].n if seq[j][0].kind == 'nop' else 1)
        k = ins.kind
        if k == 'wait':
            if ins.vm is not None:
                while len(vmq) > ins.vm:
                    done_at[vmq.pop(0)] = i
            if ins.lgkm is not None:
                if any(seq[j][0].kind == 'smem' for j in lgq) and ins.lgkm != 0:
                    err(i, 'counted lgkmcnt with SMEM outstanding')
                while len(lgq) > ins.lgkm:
                    done_at[lgq.pop(0)] = i
            pend = {r: v for r, v in pend.items() if v not in done_at}
            continue
        if k == 'barrier':
            barriers.append(i)
            continue
        for r in ins.r | ins.w:
            if r in pend:
                err(i, 'register %s has a load in flight from [%d] %s' % (r, pend[r], seq[pend[r]][0].text))
        isv = k in ('valu', 'trans')
        if k == 'mfma':
            for r in ins.r:
                if r in last_valu_w and dist(last_valu_w[r]) < 2:
                    err(i, 'VALU write -> MFMA read of %s needs 2' % r)
            for r in ins.A | ins.B:
                if r in last_mfma_w and dist(last_mfma_w[r]) < 8:
                    err(i, 'MFMA D -> MFMA A/B %s needs 8' % r)
            for r in ins.C:
                if r in last_mfma_w and seq[last_mfma_w[r]][0].w != ins.C and dist(last_mfma_w[r]) < 6:
                    err(i, 'MFMA D -> partial C %s needs 6' % r)
        else:
            for r in ins.r | ins.w:
                if r in last_mfma_w and dist(last_mfma_w[r]) < 8:
                    err(i, 'MFMA D -> %s access of %s needs 8' % (k, r))
        if isv:
            for r in ins.w:
                if r in last_mfma_c and dist(last_mfma_c[r]) < 3:
                    err(i, 'MFMA reads C -> VALU write %s needs 3' % r)
                if r in last_store and dist(last_store[r]) < 2:
                    err(i, 'wide store data WAR %s needs 2' % r)
            for r in ins.r:
                if k == 'valu' and r in last_trans_w and last_valu_w.get(r) == last_trans_w[r] and dist(last_trans_w[r]) < 1:
                    err(i, 'trans -> VALU %s needs 1' % r)
                if r in last_valu_w:
                    d = dist(last_valu_w[r])
                    if (ins.op.startswith('v_permlane') or ins.dpp) and d < 2:
                        err(i, 'VALU -> permlane/DPP %s needs 2' % r)
                    if ins.op.startswith('v_readfirstlane') and d < 1:
                        err(i, 'VALU -> readfirstlane %s needs 1' % r)
                    if (r[0] == 's' or r == 'vcc') and d < 2:
                        err(i, 'VALU SGPR write -> VALU read %s needs 2' % r)
        elif k in ('ds', 'vmem', 'mfma'):
            for r in ins.w:
                if r in last_store and dist(last_store[r]) < 1:
                    err(i, 'wide store data WAR %s needs 1' % r)
        if k == 'vmem':
            for r in ins.r:
                if r[0] == 's' and r in last_valu_w and dist(last_valu_w[r]) < 5:
                    err(i, 'VALU SGPR write -> VMEM read %s needs 5' % r)
            if getattr(ins, 'dma', False) and 'm0' in last_salu_w and dist(last_salu_w['m0']) < 1:
                err(i, 'M0 write -> LDS DMA needs 1')
        for r in ins.w:
            for d in (last_valu_w, last_trans_w, last_mfma_w):
                d.pop(r, None)
        if isv:
            for r in ins.w:
                last_valu_w[r] = i
                if k == 'trans':
                    last_trans_w[r] = i
        elif k == 'mfma':
            for r in ins.w:
                last_mfma_w[r] = i
            for r in ins.C:
                last_mfma_c[r] = i
        elif k == 'salu':
            for r in ins.w:
                last_salu_w[r] = i
        if k == 'vmem':
            vmq.append(i)
            if len(vmq) > 63:
                err(i, 'more than 63 VMEM ops outstanding')
            for r in ins.w:
                pend[r] = i
            if getattr(ins, 'wide', False):
                for r in ins.data:
                    last_store[r] = i
        elif k in ('ds', 'smem'):
            lgq.append(i)
            if len(lgq) > 15 and verbose and k == 'ds':
                pass
            for r in ins.w:
                pend[r] = i
    import bisect
    BLK = 256
    state = {}

    def ordered(a, wa, b, wb):
        A, B = seq[a][0], seq[b][0]
        if wa == wb and A.kind == 'ds' and B.kind == 'ds':
            return True
        c = done_at.get(a)
        if c is None:
            return False
        if wa == wb:
            return c < b
        j = bisect.bisect_right(barriers, c)
        return j < len(barriers) and barriers[j] < b

    seen = set()
    for i, (ins, trip) in enumerate(seq):
        for acc, fn in (('r', ins.lds_r), ('w', ins.lds_w)):
            if fn is None:
                continue
            for w in range(nwaves):
                for (s, e) in fn(w, trip):
                    assert 0 <= s < e <= 163840, (ins.text, s, e)
                    for blk in range(s // BLK, (e + BLK - 1) // BLK):
                        st = state.setdefault(blk, {'w': [], 'r': []})
                        prev = st['w'] if acc == 'r' else st['w'] + st['r']
                        if acc == 'r' and not st['w'] and (i, 'uninit') not in seen:
                            seen.add((i, 'uninit'))
                            err(i, 'LDS read of never-written block %d' % blk)
                        for (pw, pi) in prev:
                            if pi == i:
                                continue
                            if not ordered(pi, pw, i, w) and (pi, i) not in seen:
                                seen.add((pi, i))
                                err(i, 'LDS %s after [%d] %s (waves %d,%d, byte %d) not ordered' % (acc, pi, seq[pi][0].text, pw, w, blk * BLK))
            for w in range(nwaves):
                for (s, e) in fn(w, trip):
                    for blk in range(s // BLK, (e + BLK - 1) // BLK):
                        st = state[blk]
                        if acc == 'r':
                            st['r'] = [(pw, pi) for (pw, pi) in st['r'] if pw != w] + [(w, i)]
                        else:
                            same = [(pw, pi) for (pw, pi) in st['w'] if seq[pi][0].tag == ins.tag and ins.tag is not None]
                            st['w'] = same + [(w, i)]
                            st['r'] = []
    return errs
```

```python
import math, struct, sys
from asmlib import I, Prog, fill, check, cycles

NAME = 'recurrent_scan__gqa_block_cached__glu_gated_glu__prompt'
K1 = 1024


def f32(x):
    return '0x%08x' % struct.unpack('<I', struct.pack('<f', x))[0]


C_SCALE = math.log2(math.e) / math.sqrt(128.0)
SQRT128 = math.sqrt(128.0)

SRD_X, SRD_K, SRD_V, SRD_WQ, SRD_WO, SRD_WG, SRD_WU, SRD_WD, SRD_OUT, SRD_WS, SRD_DBG, SRD_CODE = [28 + 4 * i for i in range(12)]
sW, sG, sR, sRB, sCB, sMODE, sCNT = 76, 77, 78, 79, 80, 81, 82
sRING, sSO, sKA, sKB, sM0K, sT0, sT1, sT2, sT3 = 83, 84, 85, 86, 87, 88, 89, 90, 91
sH0, sH1, sHSO, sSBASE, sR4, sC1, sC2, sSO2 = 92, 93, 94, 95, 96, 97, 98, 99
STAMP0 = 4


def srd(b):
    return 's[%d:%d]' % (b, b + 3)


def v(a, n=1):
    return 'v%d' % a if n == 1 else 'v[%d:%d]' % (a, a + n - 1)


def a_(a, n=1):
    return 'a%d' % a if n == 1 else 'a[%d:%d]' % (a, a + n - 1)


vLANE = 1
vPA12 = 2
vD1 = 6
vD2 = 10
vXB = 14
vKD = 16
vUT = 20
vMINIT = 24
vD45 = 28
vVA = 2
vKA = 10
vVD = 14
vL16 = 20
vTMP = 21
vH = 32
vP = 32
vGATE = 64
vQ = 64
vACC = 128
vS = 128
vNEGM = 192
vPA45 = 2
aUP = 0
aB = 192
aA = 224
aO, aL, aONE, aKF, aVF = 0, 128, 144, 148, 164
aPARK = 248
aHF = 0
vB4 = 32
XS = 96 * K1
VBASE = 64 * K1
HOFF, SOFF = 0, 8 << 20
HROW = 56 * 4096


def ring12(w):
    return (w & 1) * 8 * K1 + (48 * K1 if w < 2 else 0)


SLOT12 = {0: 16 * K1, 1: 32 * K1, 2: 0}


def pos12(m):
    return SLOT12[(m // 2) % 3] + 4096 * (m & 1)


def pos45(m):
    p = m % 6
    if p < 2:
        return 1, 4096 * p, 64 * K1 + 4096 * p
    o = (0 if p < 4 else 32 * K1) + 4096 * (p & 1)
    return 0, o, o


class Gen:
    def __init__(self, prof=False, dump=None):
        self.p = Prog()
        self.prof, self.dump = prof, dump
        self.vm = []
        self.lg = []
        self.nstamp = 0

    def VM(self, text, key, **kw):
        self.vm.append(key)
        return I(text, **kw)

    def LG(self, text, key, **kw):
        self.lg.append(key)
        return I(text, **kw)

    def after(self, log, tag):
        idx = max(i for i, t in enumerate(log) if t == tag)
        return len(log) - 1 - idx

    def wait(self, vm=None, lg=None):
        s = 's_waitcnt'
        if vm is not None:
            s += ' vmcnt(%d)' % min(self.after(self.vm, vm), 63)
        if lg is not None:
            s += ' lgkmcnt(%d)' % min(self.after(self.lg, lg), 15)
        return I(s)

    def stamp(self, name):
        self.p.mark('phase', name)
        if self.prof:
            s = STAMP0 + 2 * self.nstamp
            self.nstamp += 1
            assert s + 1 < 28
            self.p.e('s_waitcnt lgkmcnt(0)\ns_memtime s[%d:%d]\ns_waitcnt lgkmcnt(0)' % (s, s + 1))

    def setup(self):
        e = self.p.e
        e('s_cmp_ge_u32 s2, 256\ns_cbranch_scc1 L_end')
        for reg, off in ((SRD_X, 0), (SRD_WG, 48), (SRD_WU, 56), (SRD_WQ, 24), (SRD_K, 8), (SRD_V, 16), (SRD_WO, 32),
                         (SRD_WD, 64), (SRD_OUT, 72), (SRD_DBG, 80), (SRD_WS, 88)):
            e('s_load_dwordx2 s[%d:%d], s[0:1], %d' % (reg, reg + 1, off))
        if self.prof:
            e('s_memtime s[4:5]\ns_memrealtime s[100:101]')
            self.nstamp = 1
        e(f'''v_and_b32 v{vLANE}, 63, v0
        v_lshrrev_b32 v128, 6, v0
        s_and_b32 s{sG}, s2, 7
        v_readfirstlane_b32 s{sW}, v128
        s_lshr_b32 s{sR}, s2, 3''')
        for reg, size in ((SRD_X, 2 << 20), (SRD_WG, 512 * 3584), (SRD_WU, 512 * 3584), (SRD_WQ, 4 << 20), (SRD_WO, 4 << 20),
                          (SRD_WD, 1792 * 1024), (SRD_OUT, 2 << 20), (SRD_DBG, 256), (SRD_WS, 32 << 20)):
            e('s_mov_b32 s%d, 0x%x\ns_mov_b32 s%d, 0x20000' % (reg + 2, size, reg + 3))
        e(f'''v_and_b32 v129, 15, v{vLANE}
        v_lshrrev_b32 v130, 4, v{vLANE}
        v_lshlrev_b32 v131, 4, v129
        v_lshl_or_b32 v131, v130, 10, v131
        s_lshl_b32 s{sT0}, s{sR}, 16
        s_lshl_b32 s{sT1}, s{sW}, 14
        s_add_u32 s{sT0}, s{sT0}, s{sT1}
        s_add_u32 s{sT1}, s{sT0}, 4096
        s_add_u32 s{sT2}, s{sT0}, 8192
        s_add_u32 s{sT3}, s{sT0}, 12288
        s_waitcnt lgkmcnt(0)''')
        for rg in range(4):
            for c in range(4):
                r = 192 + (rg * 4 + c) * 4
                self.p.add(self.VM(f'buffer_load_dwordx4 {v(r, 4)}, v131, {srd(SRD_X)}, s{sT0 + rg} offen offset:{256 * c}', ('x', rg)))
        e(f'''v_lshrrev_b32 v132, 3, v{vLANE}
        v_bfe_u32 v133, v{vLANE}, 1, 2
        v_and_b32 v134, 1, v130
        v_xor_b32 v134, v133, v134
        v_and_b32 v135, 1, v{vLANE}
        v_lshlrev_b32 v135, 4, v135
        v_lshl_or_b32 v136, v134, 5, v135
        s_mul_i32 s{sT0}, s{sG}, 448
        s_and_b32 s{sT1}, s{sG}, 1
        s_lshl_b32 s{sT2}, s{sT1}, 6
        s_sub_u32 s{sT0}, s{sT0}, s{sT2}
        s_lshl_b32 s{sT2}, s{sW}, 7
        s_add_u32 s{sT2}, s{sT0}, s{sT2}
        v_mul_u32_u24 v137, 3584, v132
        v_add3_u32 v{vD1}, v137, v136, s{sT2}
        v_xor_b32 v138, 64, v136
        v_add3_u32 v{vD1 + 1}, v137, v138, s{sT2}
        v_add_u32 v{vD1 + 1}, {8 * 3584 - 1024}, v{vD1 + 1}
        v_add_u32 v{vD1 + 2}, {16 * 3584 - 2048}, v{vD1}
        v_add_u32 v{vD1 + 3}, {16 * 3584 - 2048}, v{vD1 + 1}
        s_and_b32 s{sRING}, s{sW}, 1
        s_lshl_b32 s{sRING}, s{sRING}, 13
        s_cmp_lt_u32 s{sW}, 2
        s_cselect_b32 s{sT3}, {48 * K1}, 0
        s_add_u32 s{sRING}, s{sRING}, s{sT3}''')
        for m in range(5):
            self.p.add(self.dma12_setup(m))
            self.p.e('s_nop 0')
            for pc in range(4):
                self.p.add(self.dma12(m, pc))
        e(f'''s_lshl_b32 s{sT1}, s{sR}, 2
        s_add_u32 s{sT1}, s{sT1}, s{sW}
        s_lshl_b32 s{sT1}, s{sT1}, 2
        v_bfe_u32 v139, v{vLANE}, 2, 2
        v_add_u32 v139, s{sT1}, v139
        v_mul_u32_u24 v139, 3584, v139
        v_and_b32 v140, 3, v{vLANE}
        v_lshlrev_b32 v140, 7, v140
        v_add3_u32 v139, v139, v140, s{sT0}
        v_bfe_u32 v140, v{vLANE}, 3, 2
        v_add_u32 v140, s{sT1}, v140
        v_lshlrev_b32 v140, 13, v140
        v_and_b32 v141, 7, v{vLANE}
        v_lshl_or_b32 v140, v141, 7, v140
        s_lshl_b32 s{sT2}, s{sG}, 10
        s_lshl_b32 s{sT1}, s{sT1}, 8
        v_lshlrev_b32 v141, 7, v141
        s_getpc_b64 s[{SRD_CODE}:{SRD_CODE + 1}]
        L_pc:
        s_mov_b32 s{SRD_CODE + 2}, L_end-L_pc
        s_mov_b32 s{SRD_CODE + 3}, 0x20000''')
        self.p.add(self.VM(f'buffer_load_dword a252, v141, {srd(SRD_CODE)}, s{sT1} offen', 'warm'))
        self.p.add(self.VM(f'buffer_load_dword a253, v139, {srd(SRD_WG)}, 0 offen', 'warm'))
        self.p.add(self.VM(f'buffer_load_dword a254, v139, {srd(SRD_WU)}, 0 offen', 'warm'))
        self.p.add(self.VM(f'buffer_load_dword a255, v140, {srd(SRD_WQ)}, s{sT2} offen', 'warm'))
        e(f'''s_lshl_b32 s{sT0}, s{sG}, 19
        s_add_u32 s{SRD_K}, s{SRD_K}, s{sT0}
        s_addc_u32 s{SRD_K + 1}, s{SRD_K + 1}, 0
        s_add_u32 s{SRD_V}, s{SRD_V}, s{sT0}
        s_addc_u32 s{SRD_V + 1}, s{SRD_V + 1}, 0
        s_sub_u32 s{SRD_K + 2}, 0x400000, s{sT0}
        s_sub_u32 s{SRD_V + 2}, 0x400000, s{sT0}
        s_mov_b32 s{SRD_K + 3}, 0x20000
        s_mov_b32 s{SRD_V + 3}, 0x20000
        s_mov_b32 s{sMODE}, 0
        s_lshl_b32 s{sRB}, s{sG}, 2
        s_lshr_b32 s{sT0}, s{sR}, 3
        s_add_u32 s{sRB}, s{sRB}, s{sT0}
        s_and_b32 s{sCB}, s{sR}, 7
        s_lshl_b32 s{sM0K}, s{sW}, 12
        s_lshl_b32 s{sR4}, s{sW}, 13
        s_add_u32 s{sR4}, s{sR4}, {VBASE}''')
        e(f'''s_lshl_b32 s{sT0}, s{sG}, 2
        s_add_u32 s{sT0}, s{sT0}, s{sW}
        s_lshl_b32 s{sT0}, s{sT0}, 8
        v_lshlrev_b32 v137, 13, v132
        v_add3_u32 v{vD2}, v137, v136, s{sT0}
        v_add3_u32 v{vD2 + 1}, v137, v138, s{sT0}
        v_add_u32 v{vD2 + 1}, {8 * 8192 - 1024}, v{vD2 + 1}
        v_add_u32 v{vD2 + 2}, {16 * 8192 - 2048}, v{vD2}
        v_add_u32 v{vD2 + 3}, {16 * 8192 - 2048}, v{vD2 + 1}''')
        e(f'''v_xor_b32 v134, v133, v130
        v_lshl_or_b32 v134, v134, 5, v135
        v_lshl_or_b32 v{vD45}, v132, 10, v134
        v_add_u32 v{vD45 + 1}, 7168, v{vD45}
        v_add_u32 v{vD45 + 2}, {2 * 7168}, v{vD45}
        v_add_u32 v{vD45 + 3}, {3 * 7168}, v{vD45}''')
        e(f'''v_lshrrev_b32 v146, 2, v129
        v_and_b32 v147, 3, v129
        v_lshlrev_b32 v147, 3, v147
        v_and_b32 v148, 1, v130
        v_lshrrev_b32 v149, 3, v129
        v_lshl_or_b32 v149, v148, 1, v149
        v_lshl_or_b32 v150, v148, 2, v146
        v_lshl_or_b32 v149, v149, 5, v147
        v_lshl_or_b32 v150, v150, 5, v147
        v_lshl_add_u32 v151, v130, 3, v146
        v_lshl_add_u32 v152, v130, 2, v146
        v_lshl_or_b32 v153, v151, 7, v149
        v_add_u32 v{vPA12}, s{sRING}, v153
        v_lshl_or_b32 v153, v152, 7, v149
        v_add_u32 v153, s{sR4}, v153
        v_lshl_or_b32 v154, v152, 8, v150
        v_add_u32 v154, {VBASE}, v154
        v_accvgpr_write_b32 a{aPARK}, v153
        v_accvgpr_write_b32 a{aPARK + 1}, v154''')
        for t in range(1, 4):
            e(f'v_xor_b32 v{vPA12 + t}, {32 * t}, v{vPA12}')
        e(f'''v_xor_b32 v155, v129, v130
        v_lshlrev_b32 v155, 4, v155
        v_lshl_or_b32 v156, v129, 8, v155
        v_accvgpr_write_b32 a{aPARK + 2}, v156
        v_lshl_or_b32 v{vKD}, v130, 8, v155
        v_xor_b32 v{vKD + 1}, 64, v{vKD}
        v_xor_b32 v{vKD + 2}, 128, v{vKD}
        v_xor_b32 v{vKD + 3}, 192, v{vKD}
        v_lshrrev_b32 v156, 1, v129
        v_xor_b32 v156, v156, v130
        v_lshl_or_b32 v156, v156, 5, v135
        v_lshl_or_b32 v156, v130, 8, v156
        v_accvgpr_write_b32 a{aPARK + 3}, v156
        v_lshl_or_b32 v156, v130, 8, v155
        v_add_u32 v{vXB}, {XS}, v156
        v_xor_b32 v{vXB + 1}, 64, v{vXB}
        v_and_b32 v156, 7, v129
        v_xor_b32 v156, v156, v130
        v_lshlrev_b32 v156, 4, v156
        v_lshl_or_b32 v156, v147, 5, v156
        v_lshl_or_b32 v156, v146, 10, v156
        s_lshl_b32 s{sT0}, s{sW}, 14
        s_add_u32 s{sT0}, s{sT0}, {XS}
        v_add_u32 v60, s{sT0}, v156
        v_xor_b32 v61, 64, v60
        v_xor_b32 v62, 128, v60
        v_xor_b32 v63, 192, v60''')
        for q in range(4):
            e(f'v_mov_b32 v{vMINIT + q}, 0xff800000')
        e(f'''s_mul_i32 s{sT0}, s{sG}, 7
        s_and_b32 s{sT1}, s{sG}, 1
        s_sub_u32 s{sT2}, s{sT0}, s{sT1}
        s_lshl_b32 s{sT3}, s{sW}, 1
        s_add_u32 s{sT2}, s{sT2}, s{sT3}
        s_mul_i32 s{sH0}, s{sR}, {HROW}
        s_lshl_b32 s{sT3}, s{sT2}, 12
        s_add_u32 s{sH0}, s{sH0}, s{sT3}
        s_add_u32 s{sH1}, s{sH0}, 4096
        s_add_u32 s{sT3}, s{sT2}, 1
        s_cmp_lt_i32 s{sT2}, s{sT0}
        s_cselect_b32 s{sH0}, 0x40000000, s{sH0}
        s_add_u32 s{sT0}, s{sT0}, 7
        s_cmp_ge_i32 s{sT3}, s{sT0}
        s_cselect_b32 s{sH1}, 0x40000000, s{sH1}
        s_mov_b32 s{sC1}, {f32(-SQRT128)}
        s_mov_b32 s{sC2}, {f32(1.0 / C_SCALE)}''')

    def layernorm(self):
        e = self.p.e
        X = lambda rg, n: 64 + 32 * rg + n
        acc = lambda rg: 32 + 2 * rg
        st = lambda rg: 40 + 2 * rg
        for rg in range(4):
            self.p.add(self.wait(vm=('x', rg)))
            for n in range(16):
                r = 192 + rg * 16 + n
                e(f'v_lshlrev_b32 v{X(rg, 2 * n)}, 16, v{r}\nv_and_b32 v{X(rg, 2 * n + 1)}, 0xffff0000, v{r}')
            e(f'v_pk_add_f32 {v(acc(rg), 2)}, {v(X(rg, 0), 2)}, {v(X(rg, 2), 2)}')
            e(f'v_pk_add_f32 {v(48, 2)}, {v(X(rg, 4), 2)}, {v(X(rg, 6), 2)}')
            for n in range(4, 16, 2):
                e(f'v_pk_add_f32 {v(acc(rg), 2)}, {v(acc(rg), 2)}, {v(X(rg, 2 * n), 2)}')
                e(f'v_pk_add_f32 {v(48, 2)}, {v(48, 2)}, {v(X(rg, 2 * n + 2), 2)}')
            e(f'v_pk_add_f32 {v(acc(rg), 2)}, {v(acc(rg), 2)}, {v(48, 2)}')

        def rowsum():
            for rg in range(4):
                e(f'v_add_f32 v{st(rg)}, v{acc(rg)}, v{acc(rg) + 1}')
            for sh in (8, 4, 2, 1):
                for rg in range(4):
                    e(f'v_add_f32_dpp v{st(rg)}, v{st(rg)}, v{st(rg)} row_ror:{sh} row_mask:0xf bank_mask:0xf')
        rowsum()
        for rg in range(4):
            e(f'v_mul_f32 v{st(rg)}, {f32(-1.0 / 512)}, v{st(rg)}')
        for n in range(16):
            for rg in range(4):
                e(f'v_pk_add_f32 {v(X(rg, 2 * n), 2)}, {v(X(rg, 2 * n), 2)}, {v(st(rg), 2)} op_sel_hi:[1,0]')
        for n in range(16):
            for rg in range(4):
                x = v(X(rg, 2 * n), 2)
                e(f'v_pk_mul_f32 {v(acc(rg), 2)}, {x}, {x}' if n == 0 else f'v_pk_fma_f32 {v(acc(rg), 2)}, {x}, {x}, {v(acc(rg), 2)}')
        rowsum()
        e(f'v_mov_b32 v48, {f32(1e-5)}')
        for rg in range(4):
            e(f'v_fmamk_f32 v{st(rg)}, v{st(rg)}, {f32(1.0 / 512)}, v48')
        for rg in range(4):
            e(f'v_rsq_f32 v{st(rg)}, v{st(rg)}')
        for rg in range(4):
            e(f'v_mul_f32 v{st(rg)}, {f32(C_SCALE)}, v{st(rg)}')
        for rg in range(4):
            for n in range(16):
                e(f'v_pk_mul_f32 {v(X(rg, 2 * n), 2)}, {v(X(rg, 2 * n), 2)}, {v(st(rg), 2)} op_sel_hi:[1,0]')
            for n in range(16):
                e(f'v_cvt_pk_bf16_f32 v{192 + rg * 16 + n}, v{X(rg, 2 * n)}, v{X(rg, 2 * n + 1)}')
            for c in range(4):
                self.p.add(self.LG(f'ds_write_b128 v{60 + rg}, {v(192 + rg * 16 + 4 * c, 4)} offset:{4096 * c}', 'xsw', tag='xs',
                                   lds_w=lambda w, t, c=c: [(XS + w * 16384 + c * 4096, XS + w * 16384 + c * 4096 + 4096)]))
        e('s_waitcnt lgkmcnt(0)\ns_barrier')

    def dma12_setup(self, m):
        ks, half = (m % 32) // 2, m & 1
        if m < 32:
            so = ks * 32 * 3584
        else:
            so = ks * 32 * 8192 + 128 * half
        return [I(f's_add_u32 m0, s{sRING}, {pos12(m)}'), I(f's_mov_b32 s{sSO}, {so}')]

    def dma12(self, m, pc):
        s = (SRD_WU if m & 1 else SRD_WG) if m < 32 else SRD_WQ
        vo = (vD1 if m < 32 else vD2) + pc
        o = pos12(m) + 1024 * pc
        return self.VM(f'buffer_load_dwordx4 v{vo}, {srd(s)}, s{sSO} offen offset:{1024 * pc} lds', ('u12', m), tag=('u12', m),
                       lds_w=lambda w, t: [(ring12(w) + o, ring12(w) + o + 1024)])

    def aread12(self, m, t):
        o = pos12(m)
        r = aA + 4 * ((4 * m + t) % 6)
        return [self.LG(f'ds_read_b64_tr_b16 {a_(r + 2 * u, 2)}, v{vPA12 + t} offset:{o + 512 * u}', ('a12', m, t),
                        lds_r=lambda w, tr: [(ring12(w) + o, ring12(w) + o + 4096)]) for u in range(2)]

    def bread12(self, ks, qb):
        k = ks % 16
        o = qb * 16384 + k * 1024
        return self.LG(f'ds_read_b128 {a_(aB + 16 * (ks & 1) + 4 * qb, 4)}, v{vXB + (k & 1)} offset:{o}', ('b12', ks),
                       lds_r=lambda w, t: [(XS + o, XS + o + 1024)])

    def kdma(self, c, pc, so):
        o = (c & 3) * 16384 + 1024 * pc
        return self.VM(f'buffer_load_dwordx4 v{vKD + pc}, {srd(SRD_K)}, s{so} offen offset:{1024 * pc} lds', ('K', c), tag=('K', c),
                       lds_w=lambda w, t: [(o + w * 4096, o + w * 4096 + 1024)])

    def vdma(self, c, pc, so):
        o = VBASE + ((c + 3) & 3) * 16384 + 1024 * pc
        return self.VM(f'buffer_load_dwordx4 v{vVD + (pc & 1)}, {srd(SRD_V)}, s{so} offen offset:{1024 * pc} lds', ('V', c), tag=('V', c),
                       lds_w=lambda w, t: [(o + w * 4096, o + w * 4096 + 1024)])

    def glu_epilogue(self):
        out = []
        for kap in range(2):
            for qb in range(4):
                for tt in range(2):
                    t = 2 * kap + tt
                    g = vGATE + (t * 4 + qb) * 4
                    u = aUP + (t * 4 + qb) * 4
                    h = vH + (kap * 4 + qb) * 4 + 2 * tt
                    out += [I(f'v_mul_f32 v{g + r}, s{sC1}, v{g + r}') for r in range(4)]
                    for r in range(4):
                        out += [I(f'v_exp_f32 v{g + r}, v{g + r}'), I(f'v_accvgpr_read_b32 v{vUT + r}, a{u + r}')]
                    out += [I(f'v_add_f32 v{g + r}, 1.0, v{g + r}') for r in range(4)]
                    out += [I(f'v_rcp_f32 v{g + r}, v{g + r}') for r in range(4)]
                    out += [I(f'v_mul_f32 v{g + r}, v{g + r}, v{vUT + r}') for r in range(4)]
                    out += [I(f'v_cvt_pk_bf16_f32 v{h}, v{g}, v{g + 1}'), I(f'v_cvt_pk_bf16_f32 v{h + 1}, v{g + 2}, v{g + 3}')]
        return out

    def gemm12(self):
        p = self.p
        p.add(self.wait(vm=('u12', 0)))
        for qb in range(4):
            p.add(self.bread12(0, qb))
        for t in range(4):
            p.add(self.aread12(0, t))
        p.add(self.dma12_setup(5))
        p.add(self.wait(vm=('u12', 1), lg=('a12', 0, 1)))
        for ph in range(2):
            self.stamp('P1' if ph == 0 else 'P2')
            mf, fx = [], {}
            for m in range(32 * ph, 32 * ph + 32):
                ks, half = m // 2, m & 1
                for t in range(4):
                    g0 = len(mf)
                    A = a_(aA + 4 * ((4 * m + t) % 6), 4)
                    for qb in range(4):
                        if ph == 0:
                            d = (v(vGATE + (t * 4 + qb) * 4, 4) if half == 0 else a_(aUP + (t * 4 + qb) * 4, 4))
                        else:
                            d = v(vACC + ((4 * half + t) * 4 + qb) * 4, 4)
                        c = '0' if ks % 16 == 0 else d
                        mf.append(I(f'v_mfma_f32_16x16x32_bf16 {d}, {A}, {a_(aB + 16 * (ks & 1) + 4 * qb, 4)}, {c}'))
                    if m + 1 < 64:
                        fx[g0] = self.aread12(m + 1, t)
                    fx[g0 + 1] = []
                    if m + 5 < 64:
                        fx[g0 + 1].append(self.dma12(m + 5, t))
                    if m in (60, 61):
                        fx[g0 + 1].append(self.kdma(m - 61, t, sKA if m == 60 else sKB))
                    if half == 0 and ks + 1 < 32:
                        fx[g0 + 1].append(self.bread12(ks + 1, t))
                    if t == 3:
                        if m + 6 < 64:
                            fx[g0 + 2] = self.dma12_setup(m + 6)
                        if m == 58:
                            fx[g0 + 2] = [I(f's_lshl_b32 s{sKB}, s{sW}, 12'), I(f's_add_u32 s{sKA}, s{sKB}, {(2048 - 32) * 256}'),
                                          I(f's_and_b32 s{sKA}, s{sKA}, 0x7ffff'), I(f's_add_u32 s{sKB}, s{sKB}, {32 * 256}')]
                        if m == 59:
                            fx[g0 + 2] = [I(f's_add_u32 m0, s{sM0K}, {3 * 16384}'), I('s_barrier')]
                        if m == 60:
                            fx[g0 + 2] = [I(f's_mov_b32 m0, s{sM0K}')]
                    if t == 1:
                        fx[g0 + 3] = [self.wait(lg=('a12', m, 3))]
                    if t == 3 and m + 1 < 64:
                        fx[g0 + 3] = [self.wait(vm=('u12', m + 2) if m + 2 < 64 else None, lg=('a12', m + 1, 1))]
            bg = self.glu_epilogue() if ph == 1 else []
            p.add(fill(mf, fx, bg, bg_start=4, bg_end=len(mf) - 32))

    def kread(self, j, e):
        h = j + 1
        c, half = (h - 1) >> 1, (h - 1) & 1
        o = (c & 3) * 16384 + half * 8192 + (e >> 2) * 4096
        return self.LG(f'ds_read_b128 {a_(aKF + 4 * (e & 3), 4)}, v{vKA + (e & 3)} offset:{o}', ('kf', j, e),
                       lds_r=lambda w, t: [(o, o + 4096)])

    def vread(self, j, e, u):
        h = j - 1
        c, half = (h + 1) >> 1, (h + 1) & 1
        o = ((c + 3) & 3) * 16384 + half * 8192 + u * 4096
        return self.LG(f'ds_read_b64_tr_b16 {a_(aVF + 4 * (e & 3) + 2 * u, 2)}, v{vVA + e} offset:{o}', ('vf', j, e),
                       lds_r=lambda w, t: [(VBASE + o, VBASE + o + 4096)])

    def qk(self, j, e, czero=False):
        kb, ks = e >> 2, e & 3
        out = []
        for qb in range(4):
            d = v(vS + 32 * ((j + 1) & 1) + (kb * 4 + qb) * 4, 4)
            c = d if ks else ('0' if czero else v(vNEGM + 4 * qb, 4))
            out.append(I(f'v_mfma_f32_16x16x32_bf16 {d}, {a_(aKF + 4 * (e & 3), 4)}, {v(vQ + (ks * 4 + qb) * 4, 4)}, {c}'))
        return out

    def pv(self, j, e):
        out = []
        for qb in range(4):
            d = a_(aO + (e * 4 + qb) * 4, 4)
            out.append(I(f'v_mfma_f32_16x16x32_bf16 {d}, {a_(aVF + 4 * (e & 3), 4)}, {v(vP + 16 * ((j - 1) & 1) + 4 * qb, 4)}, {"0" if j == 1 else d}'))
        return out

    def lsum(self, j, qb):
        d = a_(aL + 4 * qb, 4)
        return I(f'v_mfma_f32_16x16x32_bf16 {d}, {a_(aONE, 4)}, {v(vP + 16 * ((j - 1) & 1) + 4 * qb, 4)}, {"0" if j == 1 else d}')

    def step(self, j, extra=None, steady=False):
        extra = extra or {}
        hasq, hasv, hass = j + 1 <= 63, j >= 1, j <= 63
        out = []
        n = j >> 1
        for e in range(8):
            mf = (self.qk(j, e) if hasq else []) + (self.pv(j, e) if hasv else [])
            j2, e2 = (j, e + 2) if e < 6 else (j + 1, e - 6)
            rd = []
            if j2 + 1 <= 63:
                rd.append(lambda: self.kread(j2, e2))
            if 1 <= j2 <= 64:
                rd += [lambda: self.vread(j2, e2, 0), lambda: self.vread(j2, e2, 1)]
            s = vS + 32 * (j & 1) + 4 * e
            pr = vP + 16 * (j & 1) + 4 * (e & 3) + 2 * (e >> 2)
            ex = [I(f'v_exp_f32 v{s + r}, v{s + r}') for r in range(4)] if hass else []
            cv = [I(f'v_cvt_pk_bf16_f32 v{pr + r}, v{s + 2 * r}, v{s + 2 * r + 1}') for r in range(2)] if hass else []

            def misc():
                m = []
                if e < 4 and j % 2 == 0 and n + 2 <= 31 and j <= 63:
                    m.append(self.kdma(n + 2, e, sKA if n % 2 == 0 else sKB))
                if e < 4 and j % 2 == 1 and n + 2 <= 32:
                    m.append(self.vdma(n + 2, e, sKB if n % 2 == 0 else sKA))
                if e == 7 and j % 2 == 0 and n + 2 <= 32:
                    m.append(I(f's_add_u32 m0, s{sM0K}, {VBASE + ((n + 2 + 3) & 3) * 16384}'))
                if e == 7 and j % 2 == 1 and n + 3 <= 32:
                    new, old = (sKB, sKA) if n % 2 == 0 else (sKA, sKB)
                    m.append(I(f's_add_u32 s{new}, s{old}, 16384'))
                    if n + 3 <= 31:
                        m.append(I(f's_add_u32 m0, s{sM0K}, {((n + 3) & 3) * 16384}'))
                if (e, 'misc') in extra:
                    m += extra[(e, 'misc')]()
                return m

            def lwait():
                j1, e1 = (j, e + 1) if e < 7 else (j + 1, 0)
                tags = []
                if j1 + 1 <= 63:
                    tags.append(('kf', j1, e1))
                if 1 <= j1 <= 64:
                    tags.append(('vf', j1, e1))
                return [self.wait(lg=tags[-1])] if tags else []

            if len(mf) == 8:
                g = {0: [ex[0]], 2: [ex[1]], 4: [ex[2]], 6: [ex[3]]}
                g[1] = [f() for f in rd[:2]]
                g[3] = [f() for f in rd[2:]] + [cv[0]]
                g[5] = misc()
                g[7] = [cv[1]] + lwait()
            else:
                g = {0: ex[0:1] + [f() for f in rd[:1]]}
                g[1] = ex[1:2] + [f() for f in rd[1:2]]
                g[2] = ex[2:3] + [f() for f in rd[2:]] + cv[0:1]
                g[3] = ex[3:4] + misc()
                g[3] += (lwait() or ([I('s_nop 0')] if hass else [])) + cv[1:2]
            for k, m in enumerate(mf):
                out.append(m)
                out += g.get(k, [])
            if e & 1:
                tail = []
                if e == 5 and j % 2 == 1 and j <= 63:
                    tail += [I('s_waitcnt vmcnt(8)') if steady else self.wait(vm=('V', n + 1)), I('s_barrier')]
                if (e, 'sum') in extra:
                    tail += extra[(e, 'sum')]()
                if hasv:
                    out.append(self.lsum(j, e >> 1))
                out += tail
        self.p.add(out)

    def attn_prologue(self):
        p, e = self.p, self.p.e
        self.stamp('Qepi')
        e('s_barrier')
        e(f'''v_accvgpr_read_b32 v{vVD}, a{aPARK + 3}
        s_add_u32 m0, s{sM0K}, {VBASE + 3 * 16384}
        v_xor_b32 v{vVD + 1}, 128, v{vVD}''')
        for pc in range(4):
            p.add(self.vdma(0, pc, sKA))
        e(f's_add_u32 s{sKA}, s{sKB}, 16384\ns_add_u32 m0, s{sM0K}, 16384\nv_lshlrev_b32 v{vL16}, 4, v{vLANE}')
        for pc in range(4):
            p.add(self.kdma(1, pc, sKA))
        e(f's_add_u32 m0, s{sM0K}, {VBASE}\ns_nop 0')
        for pc in range(4):
            p.add(self.vdma(1, pc, sKB))
        for kap in range(2):
            for qb in range(4):
                p.add(self.VM(f'buffer_store_dwordx4 {v(vH + (kap * 4 + qb) * 4, 4)}, v{vL16}, {srd(SRD_WS)}, s{sH0 + kap} offen offset:{1024 * qb} sc1', 'hst'))
        for ks in range(4):
            for qb in range(4):
                q = vQ + (ks * 4 + qb) * 4
                x, y = vACC + ((2 * ks) * 4 + qb) * 4, vACC + ((2 * ks + 1) * 4 + qb) * 4
                e(f'''v_cvt_pk_bf16_f32 v{q}, v{x}, v{x + 1}
                v_cvt_pk_bf16_f32 v{q + 1}, v{x + 2}, v{x + 3}
                v_cvt_pk_bf16_f32 v{q + 2}, v{y}, v{y + 1}
                v_cvt_pk_bf16_f32 v{q + 3}, v{y + 2}, v{y + 3}''')
            if ks:
                self.qswap(ks - 1)
        e(f'v_accvgpr_read_b32 v{vKA}, a{aPARK + 2}\nv_accvgpr_read_b32 v{vVA}, a{aPARK + 1}')
        self.qswap(3)
        for t in range(1, 4):
            e(f'v_xor_b32 v{vKA + t}, {64 * t}, v{vKA}')
        for t in range(1, 8):
            e(f'v_xor_b32 v{vVA + t}, {32 * t}, v{vVA}')
        e(f'v_mov_b32 v{vTMP}, 0x3f803f80')
        for r in range(4):
            e(f'v_accvgpr_write_b32 a{aONE + r}, v{vTMP}')
        e('L_attn:')
        self.stamp('Aprol')
        p.add(self.wait(vm=('K', 0)))
        e('s_barrier')
        for k in range(2):
            p.add(self.kread(-1, k))
        for k in range(8):
            if k + 2 < 8:
                p.add(self.kread(-1, k + 2))
            p.add(self.wait(lg=('kf', -1, k)))
            p.add(self.qk(-1, k, czero=True))
        e(f's_mov_b32 s{sSO2}, s{sKA}\ns_add_u32 s{sKA}, s{sKA}, 16384\ns_mov_b32 s{sKB}, s{sSO2}\ns_add_u32 m0, s{sM0K}, {2 * 16384}')
        p.add(self.kread(0, 0))
        p.add(self.kread(0, 1))
        e('s_nop 1')
        for qb in range(4):
            s0, s1, m = vS + 4 * qb, vS + 16 + 4 * qb, vNEGM + 4 * qb
            e(f'''v_max3_f32 v{m}, v{s0}, v{s0 + 1}, v{vMINIT + qb}
            v_max3_f32 v{m + 1}, v{s0 + 2}, v{s0 + 3}, v{s1}
            v_max3_f32 v{m}, v{m}, v{s1 + 1}, v{s1 + 2}
            v_max3_f32 v{m}, v{m}, v{m + 1}, v{s1 + 3}''')
        for op in ('v_permlane32_swap_b32', 'v_permlane16_swap_b32'):
            for qb in range(4):
                e(f'v_mov_b32 v{vNEGM + 4 * qb + 1}, v{vNEGM + 4 * qb}')
            for qb in range(4):
                e(f'{op} v{vNEGM + 4 * qb}, v{vNEGM + 4 * qb + 1}')
            for qb in range(4):
                e(f'v_max_f32 v{vNEGM + 4 * qb}, v{vNEGM + 4 * qb}, v{vNEGM + 4 * qb + 1}')
        for qb in range(4):
            m = vNEGM + 4 * qb
            e(f'v_sub_f32 v{m}, 0, v{m}')
            for r in range(1, 4):
                e(f'v_mov_b32 v{m + r}, v{m}')
        for kb in range(2):
            for qb in range(4):
                for r in range(4):
                    s = vS + (kb * 4 + qb) * 4 + r
                    e(f'v_add_f32 v{s}, v{s}, v{vNEGM + 4 * qb}')
        p.add(self.wait(vm=('V', 0), lg=('kf', 0, 0)))
        e('s_barrier')

    def qswap(self, ks):
        e = self.p.e
        for op in ('v_permlane32_swap_b32', 'v_permlane16_swap_b32'):
            for qb in range(4):
                q = vQ + (ks * 4 + qb) * 4
                e(f'{op} v{q}, v{q + 2}\n{op} v{q + 1}, v{q + 3}')

    def flag_add(self, label, sidx, base):
        return [I(f's_or_b32 s{sT0}, s{sW}, s{sMODE}' if base == 0 else f's_mov_b32 s{sT0}, s{sW}'),
                I(f's_cmp_lg_u32 s{sT0}, 0'),
                I(f's_cbranch_scc1 {label}'),
                I(f's_lshl_b32 s{sT0}, s{sidx}, 2'),
                I(f'v_mov_b32 v{vTMP}, 1'),
                I('s_mov_b64 exec, 1'),
                I(f'buffer_atomic_add v{vTMP}, off, {srd(SRD_DBG)}, s{sT0} offset:{base}'),
                I('s_mov_b64 exec, -1'),
                I(f'{label}:')]

    def poll(self, label, reg, base):
        p = self.p
        p.e(f'''v_readfirstlane_b32 s{sT0}, v{reg}
        s_lshl_b32 s{sT1}, s{sRB}, 2
        s_cmp_ge_u32 s{sT0}, 8
        s_cbranch_scc1 {label}_ok''')
        p.mark('off')
        p.e(f'''s_mov_b32 s{sT2}, 0x200000
        {label}_spin:
        s_sub_u32 s{sT2}, s{sT2}, 1
        s_cbranch_scc1 {label}_ok
        s_sleep 2
        buffer_load_dword v{reg}, off, {srd(SRD_DBG)}, s{sT1} offset:{base} sc1
        s_waitcnt vmcnt(0)
        v_readfirstlane_b32 s{sT0}, v{reg}
        s_nop 0
        s_cmp_ge_u32 s{sT0}, 8
        s_cbranch_scc0 {label}_spin''')
        p.mark('on')
        p.e(f'{label}_ok:')

    def attention(self):
        p = self.p
        self.stamp('Attn')
        for j in range(8):
            extra = {}
            if j == 5:
                extra[(7, 'sum')] = lambda: self.flag_add('L_hflag', sR, 0)
            self.step(j, extra)
        p.e(f's_mov_b32 s{sCNT}, 5\n.p2align 3\nL_loop:')
        p.mark('loop', 6)
        for j in range(8, 16):
            extra = {}
            if j == 15:
                extra[(7, 'sum')] = lambda: [I(f's_sub_u32 s{sCNT}, s{sCNT}, 1'), I('s_cbranch_scc0 L_loop')]
            self.step(j, extra, steady=True)
        p.mark('endloop')
        sh = lambda t: (t[0], t[1] + 20) if t[0] in ('K', 'V') else ((t[0], t[1] + 40, t[2]) if t[0] in ('kf', 'vf') else t)
        self.vm = [sh(t) if isinstance(t, tuple) else t for t in self.vm[-16:]]
        self.lg = [sh(t) if isinstance(t, tuple) else t for t in self.lg[-16:]]
        for j in range(56, 65):
            extra = {}
            if j == 56:
                extra[(5, 'misc')] = lambda: [I(f's_lshl_b32 s{sT1}, s{sRB}, 2')]
                extra[(6, 'misc')] = lambda: [self.VM(f'buffer_load_dword v{vTMP + 1}, off, {srd(SRD_DBG)}, s{sT1} sc1', 'hpoll')]
            if j == 62:
                extra[(0, 'misc')] = lambda: self.dma45_setup(0)
                for k in range(4):
                    extra[(1 + k, 'misc')] = lambda k=k: [self.dma45(0, k)]
                extra[(5, 'misc')] = lambda: self.dma45_setup(1)
            if j == 63:
                for k in range(4):
                    extra[(k, 'misc')] = lambda k=k: [self.dma45(1, k)]
                extra[(7, 'misc')] = lambda: self.dma45_setup(2)
            if j == 64:
                for k in range(4):
                    extra[(k, 'misc')] = lambda k=k: [self.dma45(2, k)] + (self.dma45_setup(3) if k == 3 else [])
                for k in range(3):
                    extra[(4 + k, 'misc')] = lambda k=k: [self.dma45(3, k)]
            self.step(j, extra)

    def dma45_setup(self, m):
        _, _, off = pos45(m)
        if m < 32:
            first = [I(f's_lshl_b32 s{sSBASE}, s{sG}, 19'), I(f's_lshl_b32 s{sT0}, s{sW}, 8'), I(f's_add_u32 s{sSBASE}, s{sSBASE}, s{sT0}')] if m == 0 else []
            return first + [I(f's_add_u32 m0, s{sR4}, {off}'), I(f's_add_u32 s{sSO}, s{sSBASE}, {(m // 2) * 32768 + 128 * (m & 1)}')]
        first = []
        if m == 32:
            first = [I(f's_mul_i32 s{sSO2}, s{sW}, {14 * 32768}'), I(f's_lshl_b32 s{sT0}, s{sCB}, 7'), I(f's_add_u32 s{sSO2}, s{sSO2}, s{sT0}'),
                     I(f's_mul_i32 s{sHSO}, s{sRB}, {HROW}'), I(f's_mul_i32 s{sT0}, s{sW}, {14 * 4096}'), I(f's_add_u32 s{sHSO}, s{sHSO}, s{sT0}')]
        else:
            first = [I(f's_add_u32 s{sHSO}, s{sHSO}, 4096')]
        return first + [I(f's_add_u32 m0, s{sR4}, {off}'), I(f's_add_u32 s{sSO}, s{sSO2}, {(m - 32) * 32768}')]

    def dma45(self, m, pc):
        _, _, off = pos45(m)
        o = VBASE + off + 1024 * pc
        return self.VM(f'buffer_load_dwordx4 v{vD45 + pc}, {srd(SRD_WO if m < 32 else SRD_WD)}, s{sSO} offen offset:{1024 * pc} lds', ('u45', m),
                       tag=('u45', m), lds_w=lambda w, t: [(o + 8192 * w, o + 8192 * w + 1024)])

    def hload(self, m, qb):
        return self.VM(f'buffer_load_dwordx4 {a_(aHF + 16 * (m - 32) + 4 * qb, 4)}, v{vL16}, {srd(SRD_WS)}, s{sHSO} offen offset:{1024 * qb} sc1', ('u45', m))

    def aread45(self, m, t):
        st, imm, off = pos45(m)
        r = aA + 4 * ((4 * m + t) % 6)
        return [self.LG(f'ds_read_b64_tr_b16 {a_(r + 2 * u, 2)}, v{vPA45 + 4 * st + t} offset:{imm + 2048 * u}', ('a45', m, t),
                        lds_r=lambda w, tr: [(VBASE + off + 8192 * w, VBASE + off + 8192 * w + 4096)]) for u in range(2)]

    def bread4(self, ks, qb):
        o = qb * 16384 + ks * 1024
        return self.LG(f'ds_read_b128 {v(vB4 + 16 * (ks & 1) + 4 * qb, 4)}, v{vL16} offset:{o}', ('b4', ks), lds_r=lambda w, t: [(o, o + 1024)])

    def o_epilogue(self):
        p, e = self.p, self.p.e
        self.stamp('Oepi')
        inv = lambda qb: vNEGM + 2 * qb
        e('s_nop 6')
        for qb in range(4):
            e(f'v_accvgpr_read_b32 v{inv(qb) + 1}, a{aL + 4 * qb}')
        for qb in range(4):
            e(f'v_rcp_f32 v{inv(qb)}, v{inv(qb) + 1}')
        e(f'''v_add_f32 v{vTMP + 2}, v{inv(0) + 1}, v{inv(1) + 1}
        v_add_f32 v{vTMP + 2}, v{vTMP + 2}, v{inv(2) + 1}
        v_add_f32 v{vTMP + 2}, v{vTMP + 2}, v{inv(3) + 1}
        v_cmp_nge_f32 vcc, {f32(2.0 ** 40)}, v{vTMP + 2}
        v_and_b32 v201, 3, v{vLANE}
        v_lshlrev_b32 v201, 13, v201
        s_cmp_lg_u64 vcc, 0
        s_cselect_b32 s{sT0}, 1, 0
        s_lshl_b32 s{sT1}, s{sW}, 2
        s_add_u32 s{sT1}, s{sT1}, {VBASE + 8192 - 16}
        v_mov_b32 v200, s{sT0}
        v_add_u32 v201, s{sT1}, v201''')
        p.add(self.LG('ds_write_b32 v201, v200', 'flagw', tag='flag',
                      lds_w=lambda w, t: [(VBASE + 8192 * k + 8192 - 16, VBASE + 8192 * k + 8192) for k in range(4)]))
        e(f's_lshl_b32 s{sT0}, s{sW}, 12\nv_add_u32 v202, s{sT0}, v{vL16}')
        k = 0
        for ks in range(4):
            for qb in range(4):
                t = vS + 16 * (k % 4)
                k += 1
                for tt in range(2):
                    for r in range(4):
                        e(f'v_accvgpr_read_b32 v{t + 4 * tt + r}, a{aO + ((2 * ks + tt) * 4 + qb) * 4 + r}')
                for r in range(4):
                    e(f'v_pk_mul_f32 {v(t + 2 * r, 2)}, {v(t + 2 * r, 2)}, {v(inv(qb), 2)} op_sel_hi:[1,0]')
                for r in range(4):
                    e(f'v_cvt_pk_bf16_f32 v{t + 8 + r}, v{t + 2 * r}, v{t + 2 * r + 1}')
                o = qb * 16384 + ks * 1024
                p.add(self.LG(f'ds_write_b128 v202, {v(t + 8, 4)} offset:{o}', 'oxw', tag='ox',
                              lds_w=lambda w, tr, o=o: [(o + w * 4096, o + w * 4096 + 1024)]))
        e(f'''v_accvgpr_read_b32 v{vPA45}, a{aPARK}
        v_mov_b32 v203, s{sR4}''')
        for t in range(1, 4):
            e(f'v_xor_b32 v{vPA45 + t}, {32 * t}, v{vPA45}')
        for t in range(4):
            e(f'v_add_u32 v{vPA45 + 4 + t}, {64 * K1}, v{vPA45 + t}')
        e('s_waitcnt lgkmcnt(0)\ns_barrier')
        p.add(self.LG('ds_read_b128 v[204:207], v203 offset:8176', 'flagr',
                      lds_r=lambda w, t: [(VBASE + 8192 * w + 8176, VBASE + 8192 * w + 8192)]))
        for qb in range(4):
            p.add(self.bread4(0, qb))
        p.add(self.wait(vm=('u45', 0)))
        for t in range(4):
            p.add(self.aread45(0, t))
        p.add(self.wait(lg='flagr'))
        e(f'''v_or3_b32 v204, v204, v205, v206
        v_or_b32 v204, v204, v207
        s_nop 0
        v_readfirstlane_b32 s{sT0}, v204
        s_nop 0
        s_andn2_b32 s{sT0}, s{sT0}, s{sMODE}
        s_cbranch_scc1 L_fallback''')
        p.add(self.dma45(3, 3))
        p.add(self.dma45_setup(4))
        e('s_nop 0')
        for pc in range(4):
            p.add(self.dma45(4, pc))
        p.add(self.dma45_setup(5))
        self.poll('L_hp', vTMP + 1, 0)
        p.add(self.wait(vm=('u45', 1), lg=('a45', 0, 1)))

    def gemm45(self):
        p = self.p
        self.stamp('P4')
        NU = 46
        mf, fx = [], {}
        sst = []
        for m in range(NU):
            if m == 32:
                p.add(fill(mf, fx))
                self.stamp('P5')
                mf, fx = [], {}
            ks, half = m // 2, m & 1
            for t in range(4):
                g0 = len(mf)
                A = a_(aA + 4 * ((4 * m + t) % 6), 4)
                for qb in range(4):
                    if m < 32:
                        d = v(vACC + ((4 * half + t) * 4 + qb) * 4, 4)
                        B, c = v(vB4 + 16 * (ks & 1) + 4 * qb, 4), ('0' if ks == 0 else d)
                    else:
                        d = v(self.acc5(t, qb), 4)
                        B, c = a_(aHF + 16 * (m - 32) + 4 * qb, 4), ('0' if m == 32 else d)
                    mf.append(I(f'v_mfma_f32_16x16x32_bf16 {d}, {A}, {B}, {c}'))
                if m + 1 < NU:
                    fx[g0] = self.aread45(m + 1, t)
                fx[g0 + 1] = []
                if m + 5 < NU:
                    fx[g0 + 1].append(self.dma45(m + 5, t))
                    if m + 5 >= 32:
                        fx[g0 + 1].append(self.hload(m + 5, t))
                if half == 0 and ks + 1 < 16:
                    fx[g0 + 1].append(self.bread4(ks + 1, t))
                if m in (32, 33):
                    fx[g0 + 2] = self.s_store(2 * (m - 32) * 4 + 2 * t) + self.s_store(2 * (m - 32) * 4 + 2 * t + 1)
                if m == 40 and t == 0:
                    fx[g0 + 2] = [self.wait(vm='sst'), I('s_barrier')] + self.flag_add('L_sflag', sR, 128)
                if m == 41 and t < 4:
                    fx[g0 + 2] = self.final_loads(t)
                if t == 3 and m + 6 < NU:
                    fx[g0 + 2] = fx.get(g0 + 2, []) + self.dma45_setup(m + 6)
                if t == 1:
                    fx[g0 + 3] = [self.wait(lg=('a45', m, 3))]
                if t == 3 and m + 1 < NU:
                    fx[g0 + 3] = [self.wait(vm=('u45', min(m + 2, NU - 1)), lg=('a45', m + 1, 1))]
        p.add(fill(mf, fx))

    def acc5(self, t, qb):
        return 32 + (t * 4 + qb) * 4

    def s_store(self, k):
        cbh, qb, half = k >> 3, (k >> 1) & 3, k & 1
        x = vACC + ((4 * cbh + 2 * half) * 4 + qb) * 4
        y = x + 16
        t = 120 + 4 * (k & 1)
        out = []
        if k == 0:
            out += [I(f's_lshl_b32 s{sSBASE}, s{sR}, 19'), I(f's_lshl_b32 s{sT0}, s{sW}, 17'), I(f's_lshl_b32 s{sT1}, s{sG}, 13'),
                    I(f's_add_u32 s{sSBASE}, s{sSBASE}, s{sT0}'), I(f's_add_u32 s{sSBASE}, s{sSBASE}, s{sT1}'),
                    I(f's_add_u32 s{sSBASE}, s{sSBASE}, {SOFF}'), I('s_nop 1')]
        elif k % 4 == 0:
            out += [I(f's_add_u32 s{sSBASE}, s{sSBASE}, {4096 if k % 8 else 65536 - 4096}')]
        out += [I(f'v_cvt_pk_bf16_f32 v{t}, v{x}, v{x + 1}'), I(f'v_cvt_pk_bf16_f32 v{t + 1}, v{x + 2}, v{x + 3}'),
                I(f'v_cvt_pk_bf16_f32 v{t + 2}, v{y}, v{y + 1}'), I(f'v_cvt_pk_bf16_f32 v{t + 3}, v{y + 2}, v{y + 3}')]
        out.append(self.VM(f'buffer_store_dwordx4 {v(t, 4)}, v{vL16}, {srd(SRD_WS)}, s{sSBASE} offen offset:{(qb & 1) * 2048 + half * 1024} sc1', 'sst'))
        return out

    def final_loads(self, t):
        out = []
        if t == 0:
            out += [I(f'v_and_b32 v10, 15, v{vLANE}'), I(f'v_lshrrev_b32 v11, 4, v{vLANE}'), I('v_lshlrev_b32 v11, 3, v11'),
                    I('v_lshl_or_b32 v10, v10, 10, v11'),
                    I(f's_lshl_b32 s{sKA}, s{sRB}, 16'), I(f's_lshl_b32 s{sT0}, s{sW}, 14'), I(f's_lshl_b32 s{sT1}, s{sCB}, 7'),
                    I(f's_add_u32 s{sKA}, s{sKA}, s{sT0}'), I(f's_add_u32 s{sKA}, s{sKA}, s{sT1}')]
        out.append(self.VM(f'buffer_load_dwordx2 {v(12 + 2 * t, 2)}, v10, {srd(SRD_X)}, s{sKA} offen offset:{32 * t}', 'xres'))
        return out

    def final(self):
        p, e = self.p, self.p.e
        self.stamp('P6')
        e(f's_lshl_b32 s{sT1}, s{sRB}, 2\ns_lshl_b32 s{sT0}, s{sW}, 12\nv_add_u32 v24, s{sT0}, v{vL16}')
        p.add(self.VM(f'buffer_load_dword v{vTMP + 1}, off, {srd(SRD_DBG)}, s{sT1} offset:128 sc1', 'spoll'))
        e(f's_lshl_b32 s{sT0}, s{sW}, 14\nv_add_u32 v25, s{sT0}, v{vL16}\ns_nop 2')
        for qb in range(4):
            for t in range(4):
                o = qb * 16384 + t * 1024
                p.add(self.LG(f'ds_write_b128 v24, {v(self.acc5(t, qb), 4)} offset:{o}', 'redw', tag='red',
                              lds_w=lambda w, tr, o=o: [(o + w * 4096, o + w * 4096 + 1024)]))
        e(f'''s_lshl_b32 s{sSBASE}, s{sRB}, 19
        s_lshl_b32 s{sT2}, s{sCB}, 16
        s_lshl_b32 s{sT3}, s{sW}, 11
        s_add_u32 s{sSBASE}, s{sSBASE}, s{sT2}
        s_add_u32 s{sSBASE}, s{sSBASE}, s{sT3}
        s_add_u32 s{sSBASE}, s{sSBASE}, {SOFF}''')
        p.add(self.wait(vm='spoll'))
        self.poll('L_sp', vTMP + 1, 128)
        for g in range(8):
            for half in range(2):
                p.add(self.VM(f'buffer_load_dwordx4 {v(128 + (g * 2 + half) * 4, 4)}, v{vL16}, {srd(SRD_WS)}, s{sSBASE} offen offset:{1024 * half} sc1', ('sp', g)))
            if g < 7:
                e(f's_add_u32 s{sSBASE}, s{sSBASE}, 8192')
        e('s_waitcnt lgkmcnt(0)\ns_barrier')
        for src in range(4):
            for t in range(4):
                o = src * 4096 + t * 1024
                p.add(self.LG(f'ds_read_b128 {v(32 + (src * 4 + t) * 4, 4)}, v25 offset:{o}', ('redr', src),
                              lds_r=lambda w, tr, o=o: [(o + w * 16384, o + w * 16384 + 1024)]))
        p.add(self.wait(lg=('redr', 1)))
        for n in range(8):
            e(f'v_pk_add_f32 {v(32 + 2 * n, 2)}, {v(32 + 2 * n, 2)}, {v(48 + 2 * n, 2)}')
        p.add(self.wait(lg=('redr', 3)))
        for n in range(8):
            e(f'v_pk_add_f32 {v(64 + 2 * n, 2)}, {v(64 + 2 * n, 2)}, {v(80 + 2 * n, 2)}')
        for n in range(8):
            e(f'v_pk_add_f32 {v(32 + 2 * n, 2)}, {v(32 + 2 * n, 2)}, {v(64 + 2 * n, 2)}')
        for n in range(16):
            e(f'v_mul_f32 v{48 + n}, s{sC1}, v{32 + n}')
        for n in range(16):
            e(f'v_exp_f32 v{48 + n}, v{48 + n}\nv_mul_f32 v{32 + n}, s{sC2}, v{32 + n}')
        for n in range(16):
            e(f'v_add_f32 v{48 + n}, 1.0, v{48 + n}')
        for n in range(16):
            e(f'v_rcp_f32 v{48 + n}, v{48 + n}')
        for n in range(16):
            e(f'v_mul_f32 v{32 + n}, v{32 + n}, v{48 + n}')
        for g in range(8):
            p.add(self.wait(vm=('sp', g)))
            dst = 64 if g == 0 else 80
            for n in range(8):
                r = 128 + g * 8 + n
                e(f'v_lshlrev_b32 v{dst + 2 * n}, 16, v{r}\nv_and_b32 v{dst + 2 * n + 1}, 0xffff0000, v{r}')
            if g:
                for n in range(8):
                    e(f'v_pk_add_f32 {v(64 + 2 * n, 2)}, {v(64 + 2 * n, 2)}, {v(80 + 2 * n, 2)}')
        for n in range(8):
            e(f'v_lshlrev_b32 v{80 + 2 * n}, 16, v{12 + n}\nv_and_b32 v{80 + 2 * n + 1}, 0xffff0000, v{12 + n}')
        for n in range(8):
            e(f'v_pk_fma_f32 {v(64 + 2 * n, 2)}, {v(64 + 2 * n, 2)}, {v(32 + 2 * n, 2)}, {v(80 + 2 * n, 2)}')
        for n in range(8):
            e(f'v_cvt_pk_bf16_f32 v{96 + n}, v{64 + 2 * n}, v{64 + 2 * n + 1}')
        for t in range(4):
            p.add(self.VM(f'buffer_store_dwordx2 {v(96 + 2 * t, 2)}, v10, {srd(SRD_OUT)}, s{sKA} offen offset:{32 * t}', 'out'))

    def fallback(self):
        p, e = self.p, self.p.e
        p.mark('off')
        e(f'''L_fallback:
        s_mov_b32 s{sMODE}, 1
        s_waitcnt vmcnt(0) lgkmcnt(0)
        s_barrier
        v_and_b32 v10, 15, v{vLANE}
        v_lshrrev_b32 v11, 4, v{vLANE}
        v_lshlrev_b32 v11, 4, v11
        v_lshl_or_b32 v10, v10, 8, v11
        s_mov_b32 s{sSO}, 0
        L_maxloop:''')
        for ks in range(4):
            e(f'buffer_load_dwordx4 {v(160 + 4 * ks, 4)}, v10, {srd(SRD_K)}, s{sSO} offen offset:{64 * ks}')
        e('s_waitcnt vmcnt(0)')
        for ks in range(4):
            for qb in range(4):
                d = v(vS + 4 * qb, 4)
                e(f'v_mfma_f32_16x16x32_bf16 {d}, {v(160 + 4 * ks, 4)}, {v(vQ + (ks * 4 + qb) * 4, 4)}, {d if ks else 0}')
        e(f's_add_u32 s{sSO}, s{sSO}, 4096\ns_nop 7')
        for qb in range(4):
            s = vS + 4 * qb
            e(f'v_max3_f32 v{vMINIT + qb}, v{s}, v{s + 1}, v{vMINIT + qb}\nv_max3_f32 v{vMINIT + qb}, v{s + 2}, v{s + 3}, v{vMINIT + qb}')
        e(f'''s_cmp_lt_u32 s{sSO}, 0x80000
        s_cbranch_scc1 L_maxloop
        v_accvgpr_read_b32 v{vKA}, a{aPARK + 2}
        v_accvgpr_read_b32 v{vVA}, a{aPARK + 1}
        s_lshl_b32 s{sKB}, s{sW}, 12
        s_add_u32 s{sKA}, s{sKB}, {(2048 - 32) * 256}
        s_and_b32 s{sKA}, s{sKA}, 0x7ffff
        s_add_u32 s{sKB}, s{sKB}, {32 * 256}''')
        for t in range(1, 4):
            e(f'v_xor_b32 v{vKA + t}, {64 * t}, v{vKA}')
        for t in range(1, 8):
            e(f'v_xor_b32 v{vVA + t}, {32 * t}, v{vVA}')
        save = list(self.vm)
        for base, fn, c, so in ((3 * 16384, self.kdma, -1, sKA), (0, self.kdma, 0, sKB), (VBASE + 3 * 16384, self.vdma, 0, sKA),
                                (VBASE, self.vdma, 1, sKB), (16384, self.kdma, 1, sKA)):
            if (fn, c) == (self.kdma, 1):
                e(f's_add_u32 s{sKA}, s{sKB}, 16384')
            e(f's_add_u32 m0, s{sM0K}, {base}\ns_nop 0')
            for pc in range(4):
                p.add(fn(c, pc, so))
        self.vm = save
        e('s_waitcnt vmcnt(0)\ns_branch L_attn')
        p.mark('on')

    def profile_out(self):
        e = self.p.e
        self.stamp('End')
        e(f'''s_memrealtime s[72:73]
        s_lshl_b32 s{sT0}, s2, 2
        s_add_u32 s{sT0}, s{sT0}, s{sW}
        s_lshl_b32 s{sT0}, s{sT0}, 7
        s_add_u32 s{sT0}, s{sT0}, {28 << 20}
        s_waitcnt lgkmcnt(0)
        s_mov_b64 exec, 1''')
        for k, r in enumerate([STAMP0 + 2 * k for k in range(12)] + [100, 72]):
            e(f'v_mov_b32 v2, s{r}\nbuffer_store_dword v2, off, {srd(SRD_WS)}, s{sT0} offset:{4 * k}')

    def build(self):
        self.setup()
        self.stamp('LN')
        self.layernorm()
        self.gemm12()
        self.attn_prologue()
        self.attention()
        self.o_epilogue()
        self.gemm45()
        self.final()
        if self.prof:
            self.profile_out()
        self.p.e('s_endpgm')
        self.fallback()
        self.p.e('L_end:')
        return self.p


HEADER = open(__file__.rsplit('/', 1)[0] + '/header.txt' if '/' in __file__ else 'header.txt').read()


def render(prog):
    k = NAME + '_kernel'
    return HEADER + f'''; @launch grid=(256,1,1) block=(256,1,1) lds=163840
.amdgcn_target "amdgcn-amd-amdhsa--gfx950"
.text
.globl {k}
.p2align 8
.type {k},@function
{k}:
''' + prog.text() + f''' s_endpgm
.section .rodata,"a"
.p2align 6
.amdhsa_kernel {k}
  .amdhsa_next_free_vgpr 512
  .amdhsa_next_free_sgpr 102
  .amdhsa_accum_offset 256
  .amdhsa_group_segment_fixed_size 0
  .amdhsa_kernarg_size 96
  .amdhsa_user_sgpr_count 2
  .amdhsa_user_sgpr_kernarg_segment_ptr 1
  .amdhsa_system_sgpr_workgroup_id_x 1
.end_amdhsa_kernel
'''


if __name__ == '__main__':
    prof = '--prof' in sys.argv
    out = [a for a in sys.argv[1:] if not a.startswith('--')][0]
    g = Gen(prof=prof)
    prog = g.build()
    tr = prog.trace()
    errs = check(tr)
    for x in errs[:40]:
        print('ERR', x)
    print(len(errs), 'checker findings')
    marks = cycles(tr)
    prev = ('start', 0)
    for m in marks:
        print('%-6s %7d' % (prev[0], m[1] - prev[1]))
        prev = m
    print('total issue-model cycles', marks[-1][1])
    open(out, 'w').write(render(prog))
```

```python
import re

TRANS = ('v_exp_f32', 'v_rcp_f32', 'v_rsq_f32', 'v_log_f32', 'v_sqrt_f32')
_REG = re.compile(r'^(-?)(?:abs\()?([vas])(?:(\d+)|\[(\d+):(\d+)\])\)?$')


def regs_of(op):
    op = op.strip().split(' ')[0]
    if op in ('vcc', 'exec', 'm0', 'scc'):
        return {op}
    m = _REG.match(op)
    if not m:
        return set()
    k = m.group(2)
    if m.group(3) is not None:
        return {k + m.group(3)}
    return {k + str(i) for i in range(int(m.group(4)), int(m.group(5)) + 1)}


class I:
    def __init__(self, text, lds_r=None, lds_w=None, tag=None):
        self.text = text
        self.lds_r, self.lds_w, self.tag = lds_r, lds_w, tag
        t = text.split(';')[0].strip()
        self.op = t.split()[0] if t else ''
        rest = t[len(self.op):].strip()
        parts = [p.strip() for p in rest.split(',')] if rest else []
        self.mods = ''
        if parts:
            last = parts[-1].split(None, 1)
            if len(last) > 1 and not self.op.startswith('s_waitcnt'):
                parts[-1], self.mods = last[0], last[1]
        fixed = []
        for p in parts:
            if fixed and fixed[-1].count('[') > fixed[-1].count(']'):
                fixed[-1] += ',' + p
            else:
                fixed.append(p)
        self.ops = fixed
        self.classify()

    def classify(self):
        op, o = self.op, self.ops
        R = lambda i: regs_of(o[i]) if i < len(o) else set()
        self.kind, self.w, self.r = 'other', set(), set()
        self.dpp = '_dpp' in op
        if op.endswith(':') or op.startswith('.') or op == '':
            self.kind = 'pseudo'
        elif op.startswith('v_mfma'):
            self.kind = 'mfma'
            self.w, self.A, self.B, self.C = R(0), R(1), R(2), R(3)
            self.r = self.A | self.B | self.C
        elif op.startswith('v_'):
            self.kind = 'trans' if op.replace('_e32', '').replace('_e64', '') in TRANS else 'valu'
            self.w = R(0)
            for i in range(1, len(o)):
                self.r |= R(i)
            if 'op_sel_hi:[1,0]' in self.text and len(o) > 2:
                lo = sorted(R(2), key=lambda x: int(x[1:]))
                if len(lo) == 2:
                    self.r = R(1) | {lo[0]}
            if op.startswith('v_permlane'):
                self.w = R(0) | R(1)
                self.r = R(0) | R(1)
            if op.startswith('v_fmac') or op.startswith('v_writelane'):
                self.r |= R(0)
            if op.startswith('v_cndmask') and len(o) == 3:
                self.r |= {'vcc'}
        elif op.startswith('ds_read'):
            self.kind = 'ds'
            self.w, self.r = R(0), R(1)
        elif op.startswith('ds_write'):
            self.kind = 'ds'
            self.r = R(0) | R(1)
        elif op.startswith('buffer_load'):
            self.kind = 'vmem'
            if re.search(r'\blds\b', self.mods):
                self.r = R(0) | R(1) | R(2) | {'m0'}
                self.dma = True
            else:
                self.w = R(0)
                self.r = R(1) | R(2) | R(3)
        elif op.startswith('buffer_store') or op.startswith('buffer_atomic'):
            self.kind = 'vmem'
            self.r = R(0) | R(1) | R(2) | R(3)
            self.data = R(0)
            self.wide = 'x4' in op or 'x3' in op
            if op.startswith('buffer_atomic') and 'sc0' in self.mods:
                self.w = R(0)
        elif op.startswith('s_load') or op.startswith('s_mem'):
            self.kind = 'smem'
            self.w = R(0)
            self.r = R(1)
        elif op == 's_waitcnt':
            self.kind = 'wait'
            m = re.search(r'vmcnt\((\d+)\)', self.text)
            self.vm = int(m.group(1)) if m else None
            m = re.search(r'lgkmcnt\((\d+)\)', self.text)
            self.lgkm = int(m.group(1)) if m else None
        elif op == 's_nop':
            self.kind = 'nop'
            self.n = int(o[0]) + 1
        elif op == 's_barrier':
            self.kind = 'barrier'
        elif op.startswith('s_cbranch') or op in ('s_branch', 's_endpgm', 's_sleep', 's_setprio'):
            self.kind = 'ctrl'
        elif op.startswith('s_cmp') or op.startswith('s_bitcmp'):
            self.kind = 'salu'
            self.r = R(0) | R(1)
        elif op.startswith('s_'):
            self.kind = 'salu'
            self.w = R(0)
            for i in range(1, len(o)):
                self.r |= R(i)
            if 'saveexec' in op:
                self.w |= {'exec'}
        else:
            raise ValueError('unclassified: ' + self.text)

    @property
    def cost(self):
        if self.kind == 'pseudo':
            return 0
        if self.kind in ('trans', 'mfma'):
            return 8
        if self.kind == 'nop':
            return 4 * self.n
        return 4


class Prog:
    def __init__(self):
        self.items = []

    def e(self, text, **kw):
        for line in text.strip().split('\n'):
            line = line.strip()
            if line:
                self.items.append(I(line, **kw))

    def add(self, ins):
        if isinstance(ins, tuple):
            self.items.append(ins)
        elif isinstance(ins, list):
            for x in ins:
                self.add(x)
        elif isinstance(ins, str):
            self.e(ins)
        else:
            self.items.append(ins)

    def mark(self, *m):
        self.items.append(m)

    def text(self):
        out = []
        for it in self.items:
            if isinstance(it, I):
                out.append(it.text if it.kind == 'pseudo' else ' ' + it.text)
        return '\n'.join(out) + '\n'

    def trace(self):
        def expand(items):
            out, i = [], 0
            while i < len(items):
                it = items[i]
                if isinstance(it, tuple) and it[0] == 'loop':
                    j = i + 1
                    while not (isinstance(items[j], tuple) and items[j][0] == 'endloop'):
                        j += 1
                    body = items[i + 1:j]
                    for t in range(it[1]):
                        on = True
                        for b in body:
                            if isinstance(b, tuple) and b[0] == 'trip':
                                on = (b[1] == t)
                            elif isinstance(b, tuple) and b[0] == 'endtrip':
                                on = True
                            elif on:
                                out.append((b, t) if isinstance(b, I) else b)
                    i = j + 1
                elif isinstance(it, tuple) and it[0] in ('off', 'off2'):
                    end = 'on' + it[0][3:]
                    while not (isinstance(items[i], tuple) and items[i][0] == end):
                        i += 1
                    i += 1
                else:
                    out.append((it, 0) if isinstance(it, I) else it)
                    i += 1
            return out
        return expand(self.items)


def fill(mfmas, fixed, background=(), bg_start=0, bg_end=None, budget=8):
    n = len(mfmas)
    bg_end = n if bg_end is None else bg_end
    gaps = [list(fixed.get(g, [])) for g in range(n)]
    used = [sum(x.cost for x in g if isinstance(x, I)) for g in gaps]
    bg = list(background)
    total = sum(x.cost for x in bg)
    span = max(bg_end - bg_start, 1)
    done, k = 0, 0
    for g in range(bg_start, bg_end):
        target = total * (g - bg_start + 1) / span
        while k < len(bg):
            c = bg[k].cost
            fits = used[g] + c <= budget
            behind = done + c <= target - 24
            ahead = done > target + 16
            if (fits and not ahead) or (behind and used[g] <= budget):
                gaps[g].append(bg[k])
                used[g] += c
                done += c
                k += 1
            else:
                break
    while k < len(bg):
        gaps[bg_end - 1].append(bg[k])
        k += 1
    out = []
    for m, g in zip(mfmas, gaps):
        out.append(m)
        out.extend(g)
    return out


def cycles(trace):
    total, gap = 0, None
    marks = []
    for it in trace:
        if not (isinstance(it, tuple) and isinstance(it[0], I)):
            if it[0] == 'phase':
                if gap is not None:
                    total += max(16, gap)
                    gap = None
                marks.append((it[1], total))
            continue
        ins = it[0]
        if ins.kind == 'mfma':
            if gap is not None:
                total += max(16, gap)
            gap = 8
        elif gap is not None:
            gap += ins.cost
        else:
            total += ins.cost
    if gap is not None:
        total += max(16, gap)
    marks.append(('end', total))
    return marks


def check(trace, nwaves=4, verbose=True):
    errs = []
    seq = [(x[0], x[1]) for x in trace if isinstance(x, tuple) and isinstance(x[0], I) and x[0].kind != 'pseudo']
    pos = []
    p = 0
    for ins, _ in seq:
        pos.append(p)
        p += ins.n if ins.kind == 'nop' else 1

    def err(i, msg):
        errs.append('[%d] %s  <- %s' % (i, seq[i][0].text, msg))

    last_valu_w, last_trans_w, last_mfma_w, last_mfma_c, last_salu_w, last_store = {}, {}, {}, {}, {}, {}
    pend = {}
    vmq, lgq = [], []
    done_at = {}
    barriers = []
    for i, (ins, trip) in enumerate(seq):
        dist = lambda j: pos[i] - pos[j] - (seq[j][0].n if seq[j][0].kind == 'nop' else 1)
        k = ins.kind
        if k == 'wait':
            if ins.vm is not None:
                while len(vmq) > ins.vm:
                    done_at[vmq.pop(0)] = i
            if ins.lgkm is not None:
                if any(seq[j][0].kind == 'smem' for j in lgq) and ins.lgkm != 0:
                    err(i, 'counted lgkmcnt with SMEM outstanding')
                while len(lgq) > ins.lgkm:
                    done_at[lgq.pop(0)] = i
            pend = {r: v for r, v in pend.items() if v not in done_at}
            continue
        if k == 'barrier':
            barriers.append(i)
            continue
        for r in ins.r | ins.w:
            if r in pend:
                err(i, 'register %s has a load in flight from [%d] %s' % (r, pend[r], seq[pend[r]][0].text))
        isv = k in ('valu', 'trans')
        if k == 'mfma':
            for r in ins.r:
                if r in last_valu_w and dist(last_valu_w[r]) < 2:
                    err(i, 'VALU write -> MFMA read of %s needs 2' % r)
            for r in ins.A | ins.B:
                if r in last_mfma_w and dist(last_mfma_w[r]) < 8:
                    err(i, 'MFMA D -> MFMA A/B %s needs 8' % r)
            for r in ins.C:
                if r in last_mfma_w and seq[last_mfma_w[r]][0].w != ins.C and dist(last_mfma_w[r]) < 6:
                    err(i, 'MFMA D -> partial C %s needs 6' % r)
        else:
            for r in ins.r | ins.w:
                if r in last_mfma_w and dist(last_mfma_w[r]) < 8:
                    err(i, 'MFMA D -> %s access of %s needs 8' % (k, r))
        if isv:
            for r in ins.w:
                if r in last_mfma_c and dist(last_mfma_c[r]) < 3:
                    err(i, 'MFMA reads C -> VALU write %s needs 3' % r)
                if r in last_store and dist(last_store[r]) < 2:
                    err(i, 'wide store data WAR %s needs 2' % r)
            for r in ins.r:
                if k == 'valu' and r in last_trans_w and last_valu_w.get(r) == last_trans_w[r] and dist(last_trans_w[r]) < 1:
                    err(i, 'trans -> VALU %s needs 1' % r)
                if r in last_valu_w:
                    d = dist(last_valu_w[r])
                    if (ins.op.startswith('v_permlane') or ins.dpp) and d < 2:
                        err(i, 'VALU -> permlane/DPP %s needs 2' % r)
                    if ins.op.startswith('v_readfirstlane') and d < 1:
                        err(i, 'VALU -> readfirstlane %s needs 1' % r)
                    if (r[0] == 's' or r == 'vcc') and d < 2:
                        err(i, 'VALU SGPR write -> VALU read %s needs 2' % r)
        elif k in ('ds', 'vmem', 'mfma'):
            for r in ins.w:
                if r in last_store and dist(last_store[r]) < 1:
                    err(i, 'wide store data WAR %s needs 1' % r)
        if k == 'vmem':
            for r in ins.r:
                if r[0] == 's' and r in last_valu_w and dist(last_valu_w[r]) < 5:
                    err(i, 'VALU SGPR write -> VMEM read %s needs 5' % r)
            if getattr(ins, 'dma', False) and 'm0' in last_salu_w and dist(last_salu_w['m0']) < 1:
                err(i, 'M0 write -> LDS DMA needs 1')
        for r in ins.w:
            for d in (last_valu_w, last_trans_w, last_mfma_w):
                d.pop(r, None)
        if isv:
            for r in ins.w:
                last_valu_w[r] = i
                if k == 'trans':
                    last_trans_w[r] = i
        elif k == 'mfma':
            for r in ins.w:
                last_mfma_w[r] = i
            for r in ins.C:
                last_mfma_c[r] = i
        elif k == 'salu':
            for r in ins.w:
                last_salu_w[r] = i
        if k == 'vmem':
            vmq.append(i)
            if len(vmq) > 63:
                err(i, 'more than 63 VMEM ops outstanding')
            for r in ins.w:
                pend[r] = i
            if getattr(ins, 'wide', False):
                for r in ins.data:
                    last_store[r] = i
        elif k in ('ds', 'smem'):
            lgq.append(i)
            if len(lgq) > 15 and verbose and k == 'ds':
                pass
            for r in ins.w:
                pend[r] = i
    import bisect
    BLK = 256
    state = {}

    def ordered(a, wa, b, wb):
        A, B = seq[a][0], seq[b][0]
        if wa == wb and A.kind == 'ds' and B.kind == 'ds':
            return True
        c = done_at.get(a)
        if c is None:
            return False
        if wa == wb:
            return c < b
        j = bisect.bisect_right(barriers, c)
        return j < len(barriers) and barriers[j] < b

    seen = set()
    for i, (ins, trip) in enumerate(seq):
        for acc, fn in (('r', ins.lds_r), ('w', ins.lds_w)):
            if fn is None:
                continue
            for w in range(nwaves):
                for (s, e) in fn(w, trip):
                    assert 0 <= s < e <= 163840, (ins.text, s, e)
                    for blk in range(s // BLK, (e + BLK - 1) // BLK):
                        st = state.setdefault(blk, {'w': [], 'r': []})
                        prev = st['w'] if acc == 'r' else st['w'] + st['r']
                        if acc == 'r' and not st['w'] and (i, 'uninit') not in seen:
                            seen.add((i, 'uninit'))
                            err(i, 'LDS read of never-written block %d' % blk)
                        for (pw, pi) in prev:
                            if pi == i:
                                continue
                            if not ordered(pi, pw, i, w) and (pi, i) not in seen:
                                seen.add((pi, i))
                                err(i, 'LDS %s after [%d] %s (waves %d,%d, byte %d) not ordered' % (acc, pi, seq[pi][0].text, pw, w, blk * BLK))
            for w in range(nwaves):
                for (s, e) in fn(w, trip):
                    for blk in range(s // BLK, (e + BLK - 1) // BLK):
                        st = state[blk]
                        if acc == 'r':
                            st['r'] = [(pw, pi) for (pw, pi) in st['r'] if pw != w] + [(w, i)]
                        else:
                            same = [(pw, pi) for (pw, pi) in st['w'] if seq[pi][0].tag == ins.tag and ins.tag is not None]
                            st['w'] = same + [(w, i)]
                            st['r'] = []
    return errs
```

```python
import math, struct, sys
from asmlib import I, Prog, fill, check, cycles

NAME = 'recurrent_scan__gqa_block_cached__glu_gated_glu__prompt'
K1 = 1024


def f32(x):
    return '0x%08x' % struct.unpack('<I', struct.pack('<f', x))[0]


C_SCALE = math.log2(math.e) / math.sqrt(128.0)
SQRT128 = math.sqrt(128.0)

SRD_X, SRD_K, SRD_V, SRD_WQ, SRD_WO, SRD_WG, SRD_WU, SRD_WD, SRD_OUT, SRD_WS, SRD_DBG, SRD_CODE = [28 + 4 * i for i in range(12)]
sW, sG, sR, sRB, sCB, sMODE, sCNT = 76, 77, 78, 79, 80, 81, 82
sRING, sSO, sKA, sKB, sM0K, sT0, sT1, sT2, sT3 = 83, 84, 85, 86, 87, 88, 89, 90, 91
sH0, sH1, sHSO, sSBASE, sR4, sC1, sC2, sSO2 = 92, 93, 94, 95, 96, 97, 98, 99
sRL, sFLAG = 3, 74
STAMP0 = 4


def srd(b):
    return 's[%d:%d]' % (b, b + 3)


def v(a, n=1):
    return 'v%d' % a if n == 1 else 'v[%d:%d]' % (a, a + n - 1)


def a_(a, n=1):
    return 'a%d' % a if n == 1 else 'a[%d:%d]' % (a, a + n - 1)


vLANE = 1
vPA12 = 2
vD1 = 6
vD2 = 10
vXB = 14
vKD = 16
vUT = 20
vMINIT = 24
vD45 = 28
vVA = 2
vKA = 10
vVD = 14
vL16 = 20
vTMP = 21
vH = 32
vP = 32
vGATE = 64
vQ = 64
vACC = 128
vS = 128
vNEGM = 192
vPA45 = 2
aUP = 0
aB = 192
aA = 224
aO, aL, aONE, aKF, aVF = 0, 128, 144, 148, 164
aPARK = 248
aHF = 0
vB4 = 32


def vSP(k):
    return 128 + 4 * k


XS = 96 * K1
VBASE = 64 * K1
HOFF, SOFF, FOFF = 0, 8 << 20, 24 << 20
HROW = 56 * 4096


def ring12(w):
    return (w & 1) * 8 * K1 + (48 * K1 if w < 2 else 0)


SLOT12 = {0: 16 * K1, 1: 32 * K1, 2: 0}


def pos12(m):
    return SLOT12[(m // 2) % 3] + 4096 * (m & 1)


def pos45(m):
    p = m % 6
    if p < 2:
        return 1, 4096 * p, 64 * K1 + 4096 * p
    o = (0 if p < 4 else 32 * K1) + 4096 * (p & 1)
    return 0, o, o


class Gen:
    def __init__(self, prof=False, dump=None, trace_even=False):
        self.trace_even = trace_even
        self.p = Prog()
        self.prof, self.dump = prof, dump
        self.vm = []
        self.vm_alt = None
        self.lg = []
        self.nstamp = 0
        self.names = []

    def VM(self, text, key, **kw):
        self.vm.append(key)
        if self.vm_alt is not None:
            self.vm_alt.append(key)
        return I(text, **kw)

    def LG(self, text, key, **kw):
        self.lg.append(key)
        return I(text, **kw)

    def after(self, log, tag):
        idx = max(i for i, t in enumerate(log) if t == tag)
        return len(log) - 1 - idx

    def wait(self, vm=None, lg=None):
        s = 's_waitcnt'
        if vm is not None:
            s += ' vmcnt(%d)' % min([self.after(log, vm) for log in (self.vm, self.vm_alt) if log is not None] + [63])
        if lg is not None:
            s += ' lgkmcnt(%d)' % min(self.after(self.lg, lg), 15)
        return I(s)

    def stamp(self, name):
        self.p.mark('phase', name)
        if self.prof:
            s = STAMP0 + self.nstamp
            self.nstamp += 1
            self.names.append(name)
            assert s < 26
            self.p.e('s_waitcnt lgkmcnt(0)\ns_memtime s[26:27]\ns_waitcnt lgkmcnt(0)\ns_mov_b32 s%d, s26' % s)

    def setup(self):
        e = self.p.e
        e('s_cmp_ge_u32 s2, 256\ns_cbranch_scc1 L_end')
        for reg, off in ((SRD_X, 0), (SRD_WG, 48), (SRD_WU, 56), (SRD_WQ, 24), (SRD_K, 8), (SRD_V, 16), (SRD_WO, 32),
                         (SRD_WD, 64), (SRD_OUT, 72), (SRD_DBG, 80), (SRD_WS, 88)):
            e('s_load_dwordx2 s[%d:%d], s[0:1], %d' % (reg, reg + 1, off))
        if self.prof:
            e('s_memtime s[4:5]\ns_memrealtime s[100:101]')
            self.nstamp = 1
            self.names.append('start')
        e(f'''v_and_b32 v{vLANE}, 63, v0
        v_lshrrev_b32 v128, 6, v0
        s_and_b32 s{sG}, s2, 3
        v_readfirstlane_b32 s{sW}, v128
        s_lshl_b32 s{sG}, s{sG}, 1
        s_bfe_u32 s{sT0}, s2, 0x10003
        s_add_u32 s{sG}, s{sG}, s{sT0}
        s_lshr_b32 s{sRL}, s2, 4
        s_bfe_u32 s{sT0}, s2, 0x10002
        s_lshl_b32 s{sT0}, s{sT0}, 4
        s_add_u32 s{sR}, s{sRL}, s{sT0}''')
        for reg, size in ((SRD_X, 2 << 20), (SRD_WG, 512 * 3584), (SRD_WU, 512 * 3584), (SRD_WQ, 4 << 20), (SRD_WO, 4 << 20),
                          (SRD_WD, 1792 * 1024), (SRD_OUT, 2 << 20), (SRD_DBG, 256), (SRD_WS, 32 << 20)):
            e('s_mov_b32 s%d, 0x%x\ns_mov_b32 s%d, 0x20000' % (reg + 2, size, reg + 3))
        e(f'''v_and_b32 v129, 15, v{vLANE}
        v_lshrrev_b32 v130, 4, v{vLANE}
        v_lshlrev_b32 v131, 4, v129
        v_lshl_or_b32 v131, v130, 10, v131
        s_lshl_b32 s{sT0}, s{sR}, 16
        s_lshl_b32 s{sT1}, s{sW}, 14
        s_add_u32 s{sT0}, s{sT0}, s{sT1}
        s_add_u32 s{sT1}, s{sT0}, 4096
        s_add_u32 s{sT2}, s{sT0}, 8192
        s_add_u32 s{sT3}, s{sT0}, 12288
        s_waitcnt lgkmcnt(0)''')
        self.stamp('karg')
        for rg in range(4):
            for c in range(4):
                r = 192 + (rg * 4 + c) * 4
                self.p.add(self.VM(f'buffer_load_dwordx4 {v(r, 4)}, v131, {srd(SRD_X)}, s{sT0 + rg} offen offset:{256 * c}', ('x', rg)))
        e(f'''v_lshrrev_b32 v132, 3, v{vLANE}
        v_bfe_u32 v133, v{vLANE}, 1, 2
        v_and_b32 v134, 1, v130
        v_xor_b32 v134, v133, v134
        v_and_b32 v135, 1, v{vLANE}
        v_lshlrev_b32 v135, 4, v135
        v_lshl_or_b32 v136, v134, 5, v135
        s_mul_i32 s{sT0}, s{sG}, 448
        s_and_b32 s{sT1}, s{sG}, 1
        s_lshl_b32 s{sT2}, s{sT1}, 6
        s_sub_u32 s{sT0}, s{sT0}, s{sT2}
        s_lshl_b32 s{sT2}, s{sW}, 7
        s_add_u32 s{sT2}, s{sT0}, s{sT2}
        v_mul_u32_u24 v137, 3584, v132
        v_add3_u32 v{vD1}, v137, v136, s{sT2}
        v_xor_b32 v138, 64, v136
        v_add3_u32 v{vD1 + 1}, v137, v138, s{sT2}
        v_add_u32 v{vD1 + 1}, {8 * 3584 - 1024}, v{vD1 + 1}
        v_add_u32 v{vD1 + 2}, {16 * 3584 - 2048}, v{vD1}
        v_add_u32 v{vD1 + 3}, {16 * 3584 - 2048}, v{vD1 + 1}
        s_and_b32 s{sRING}, s{sW}, 1
        s_lshl_b32 s{sRING}, s{sRING}, 13
        s_cmp_lt_u32 s{sW}, 2
        s_cselect_b32 s{sT3}, {48 * K1}, 0
        s_add_u32 s{sRING}, s{sRING}, s{sT3}''')
        for m in range(5):
            self.p.add(self.dma12_setup(m))
            self.p.e('s_nop 0')
            for pc in range(4):
                self.p.add(self.dma12(m, pc))
        e(f'''s_lshl_b32 s{sT1}, s{sRL}, 2
        s_add_u32 s{sT1}, s{sT1}, s{sW}
        s_lshl_b32 s{sT1}, s{sT1}, 3
        v_bfe_u32 v139, v{vLANE}, 2, 3
        v_add_u32 v139, s{sT1}, v139
        v_mul_u32_u24 v139, 3584, v139
        v_and_b32 v140, 3, v{vLANE}
        v_lshlrev_b32 v140, 7, v140
        v_add3_u32 v139, v139, v140, s{sT0}
        v_add_u32 v140, s{sT1}, v132
        v_lshlrev_b32 v140, 13, v140
        v_and_b32 v141, 7, v{vLANE}
        v_lshl_or_b32 v140, v141, 7, v140
        s_lshl_b32 s{sT2}, s{sG}, 10
        s_lshr_b32 s{sT1}, s2, 3
        s_lshl_b32 s{sT1}, s{sT1}, 2
        s_add_u32 s{sT1}, s{sT1}, s{sW}
        s_lshl_b32 s{sT1}, s{sT1}, 10
        v_lshlrev_b32 v141, 7, v141
        s_getpc_b64 s[{SRD_CODE}:{SRD_CODE + 1}]
        L_pc:
        s_mov_b32 s{SRD_CODE + 2}, L_end-L_pc
        s_mov_b32 s{SRD_CODE + 3}, 0x20000''')
        self.p.add(self.VM(f'buffer_load_dword a252, v141, {srd(SRD_CODE)}, s{sT1} offen', 'warm'))
        self.p.add(self.VM(f'buffer_load_dword a253, v139, {srd(SRD_WG)}, 0 offen', 'warm'))
        self.p.add(self.VM(f'buffer_load_dword a254, v139, {srd(SRD_WU)}, 0 offen', 'warm'))
        self.p.add(self.VM(f'buffer_load_dword a255, v140, {srd(SRD_WQ)}, s{sT2} offen', 'warm'))
        e(f'''s_lshl_b32 s{sT0}, s{sG}, 19
        s_add_u32 s{SRD_K}, s{SRD_K}, s{sT0}
        s_addc_u32 s{SRD_K + 1}, s{SRD_K + 1}, 0
        s_add_u32 s{SRD_V}, s{SRD_V}, s{sT0}
        s_addc_u32 s{SRD_V + 1}, s{SRD_V + 1}, 0
        s_sub_u32 s{SRD_K + 2}, 0x400000, s{sT0}
        s_sub_u32 s{SRD_V + 2}, 0x400000, s{sT0}
        s_mov_b32 s{SRD_K + 3}, 0x20000
        s_mov_b32 s{SRD_V + 3}, 0x20000
        s_mov_b32 s{sMODE}, 0
        s_and_b32 s{sRB}, s2, 7
        s_lshl_b32 s{sRB}, s{sRB}, 2
        s_lshr_b32 s{sT0}, s2, 6
        s_add_u32 s{sRB}, s{sRB}, s{sT0}
        s_bfe_u32 s{sCB}, s2, 0x30003
        s_lshl_b32 s{sM0K}, s{sW}, 12
        s_lshl_b32 s{sR4}, s{sW}, 13
        s_add_u32 s{sR4}, s{sR4}, {VBASE}''')
        e(f'''s_lshl_b32 s{sT0}, s{sG}, 2
        s_add_u32 s{sT0}, s{sT0}, s{sW}
        s_lshl_b32 s{sT0}, s{sT0}, 8
        v_lshlrev_b32 v137, 13, v132
        v_add3_u32 v{vD2}, v137, v136, s{sT0}
        v_add3_u32 v{vD2 + 1}, v137, v138, s{sT0}
        v_add_u32 v{vD2 + 1}, {8 * 8192 - 1024}, v{vD2 + 1}
        v_add_u32 v{vD2 + 2}, {16 * 8192 - 2048}, v{vD2}
        v_add_u32 v{vD2 + 3}, {16 * 8192 - 2048}, v{vD2 + 1}''')
        e(f'''v_xor_b32 v134, v133, v130
        v_lshl_or_b32 v134, v134, 5, v135
        v_lshl_or_b32 v{vD45}, v132, 10, v134
        v_add_u32 v{vD45 + 1}, 7168, v{vD45}
        v_add_u32 v{vD45 + 2}, {2 * 7168}, v{vD45}
        v_add_u32 v{vD45 + 3}, {3 * 7168}, v{vD45}''')
        e(f'''v_lshrrev_b32 v146, 2, v129
        v_and_b32 v147, 3, v129
        v_lshlrev_b32 v147, 3, v147
        v_and_b32 v148, 1, v130
        v_lshrrev_b32 v149, 3, v129
        v_lshl_or_b32 v149, v148, 1, v149
        v_lshl_or_b32 v150, v148, 2, v146
        v_lshl_or_b32 v149, v149, 5, v147
        v_lshl_or_b32 v150, v150, 5, v147
        v_lshl_add_u32 v151, v130, 3, v146
        v_lshl_add_u32 v152, v130, 2, v146
        v_lshl_or_b32 v153, v151, 7, v149
        v_add_u32 v{vPA12}, s{sRING}, v153
        v_lshl_or_b32 v153, v152, 7, v149
        v_add_u32 v153, s{sR4}, v153
        v_lshl_or_b32 v154, v152, 8, v150
        v_add_u32 v154, {VBASE}, v154
        v_accvgpr_write_b32 a{aPARK}, v153
        v_accvgpr_write_b32 a{aPARK + 1}, v154''')
        for t in range(1, 4):
            e(f'v_xor_b32 v{vPA12 + t}, {32 * t}, v{vPA12}')
        e(f'''v_xor_b32 v155, v129, v130
        v_lshlrev_b32 v155, 4, v155
        v_lshl_or_b32 v156, v129, 8, v155
        v_accvgpr_write_b32 a{aPARK + 2}, v156
        v_lshl_or_b32 v{vKD}, v130, 8, v155
        v_xor_b32 v{vKD + 1}, 64, v{vKD}
        v_xor_b32 v{vKD + 2}, 128, v{vKD}
        v_xor_b32 v{vKD + 3}, 192, v{vKD}
        v_lshrrev_b32 v156, 1, v129
        v_xor_b32 v156, v156, v130
        v_lshl_or_b32 v156, v156, 5, v135
        v_lshl_or_b32 v156, v130, 8, v156
        v_accvgpr_write_b32 a{aPARK + 3}, v156
        v_lshl_or_b32 v156, v130, 8, v155
        v_add_u32 v{vXB}, {XS}, v156
        v_xor_b32 v{vXB + 1}, 64, v{vXB}
        v_and_b32 v156, 7, v129
        v_xor_b32 v156, v156, v130
        v_lshlrev_b32 v156, 4, v156
        v_lshl_or_b32 v156, v147, 5, v156
        v_lshl_or_b32 v156, v146, 10, v156
        s_lshl_b32 s{sT0}, s{sW}, 14
        s_add_u32 s{sT0}, s{sT0}, {XS}
        v_add_u32 v60, s{sT0}, v156
        v_xor_b32 v61, 64, v60
        v_xor_b32 v62, 128, v60
        v_xor_b32 v63, 192, v60''')
        for q in range(4):
            e(f'v_mov_b32 v{vMINIT + q}, 0xff800000')
        e(f'''s_mul_i32 s{sT0}, s{sG}, 7
        s_and_b32 s{sT1}, s{sG}, 1
        s_sub_u32 s{sT2}, s{sT0}, s{sT1}
        s_lshl_b32 s{sT3}, s{sW}, 1
        s_add_u32 s{sT2}, s{sT2}, s{sT3}
        s_mul_i32 s{sH0}, s{sR}, {HROW}
        s_lshl_b32 s{sT3}, s{sT2}, 12
        s_add_u32 s{sH0}, s{sH0}, s{sT3}
        s_add_u32 s{sH1}, s{sH0}, 4096
        s_add_u32 s{sT3}, s{sT2}, 1
        s_cmp_lt_i32 s{sT2}, s{sT0}
        s_cselect_b32 s{sH0}, 0x40000000, s{sH0}
        s_add_u32 s{sT0}, s{sT0}, 7
        s_cmp_ge_i32 s{sT3}, s{sT0}
        s_cselect_b32 s{sH1}, 0x40000000, s{sH1}
        s_lshl_b32 s{sFLAG}, s{sR}, 10
        s_lshl_b32 s{sT0}, s{sW}, 8
        s_lshl_b32 s{sT1}, s{sG}, 2
        s_add_u32 s{sFLAG}, s{sFLAG}, s{sT0}
        s_add_u32 s{sFLAG}, s{sFLAG}, s{sT1}
        s_add_u32 s{sFLAG}, s{sFLAG}, {FOFF}
        s_mov_b32 s{sC1}, {f32(-SQRT128)}
        s_mov_b32 s{sC2}, {f32(1.0 / C_SCALE)}''')

    def layernorm(self):
        e = self.p.e
        X = lambda rg, n: 64 + 32 * rg + n
        acc = lambda rg: 32 + 2 * rg
        st = lambda rg: 40 + 2 * rg
        for rg in range(4):
            self.p.add(self.wait(vm=('x', rg)))
            if rg == 0:
                self.stamp('LNc')
            for n in range(16):
                r = 192 + rg * 16 + n
                e(f'v_lshlrev_b32 v{X(rg, 2 * n)}, 16, v{r}\nv_and_b32 v{X(rg, 2 * n + 1)}, 0xffff0000, v{r}')
            e(f'v_pk_add_f32 {v(acc(rg), 2)}, {v(X(rg, 0), 2)}, {v(X(rg, 2), 2)}')
            e(f'v_pk_add_f32 {v(48, 2)}, {v(X(rg, 4), 2)}, {v(X(rg, 6), 2)}')
            for n in range(4, 16, 2):
                e(f'v_pk_add_f32 {v(acc(rg), 2)}, {v(acc(rg), 2)}, {v(X(rg, 2 * n), 2)}')
                e(f'v_pk_add_f32 {v(48, 2)}, {v(48, 2)}, {v(X(rg, 2 * n + 2), 2)}')
            e(f'v_pk_add_f32 {v(acc(rg), 2)}, {v(acc(rg), 2)}, {v(48, 2)}')

        def rowsum():
            for rg in range(4):
                e(f'v_add_f32 v{st(rg)}, v{acc(rg)}, v{acc(rg) + 1}')
            for sh in (8, 4, 2, 1):
                for rg in range(4):
                    e(f'v_add_f32_dpp v{st(rg)}, v{st(rg)}, v{st(rg)} row_ror:{sh} row_mask:0xf bank_mask:0xf')
        rowsum()
        for rg in range(4):
            e(f'v_mul_f32 v{st(rg)}, {f32(-1.0 / 512)}, v{st(rg)}')
        for n in range(16):
            for rg in range(4):
                e(f'v_pk_add_f32 {v(X(rg, 2 * n), 2)}, {v(X(rg, 2 * n), 2)}, {v(st(rg), 2)} op_sel_hi:[1,0]')
        for n in range(16):
            for rg in range(4):
                x = v(X(rg, 2 * n), 2)
                e(f'v_pk_mul_f32 {v(acc(rg), 2)}, {x}, {x}' if n == 0 else f'v_pk_fma_f32 {v(acc(rg), 2)}, {x}, {x}, {v(acc(rg), 2)}')
        rowsum()
        e(f'v_mov_b32 v48, {f32(1e-5)}')
        for rg in range(4):
            e(f'v_fmamk_f32 v{st(rg)}, v{st(rg)}, {f32(1.0 / 512)}, v48')
        for rg in range(4):
            e(f'v_rsq_f32 v{st(rg)}, v{st(rg)}')
        for rg in range(4):
            e(f'v_mul_f32 v{st(rg)}, {f32(C_SCALE)}, v{st(rg)}')
        for rg in range(4):
            for n in range(16):
                e(f'v_pk_mul_f32 {v(X(rg, 2 * n), 2)}, {v(X(rg, 2 * n), 2)}, {v(st(rg), 2)} op_sel_hi:[1,0]')
            for n in range(16):
                e(f'v_cvt_pk_bf16_f32 v{192 + rg * 16 + n}, v{X(rg, 2 * n)}, v{X(rg, 2 * n + 1)}')
            for c in range(4):
                self.p.add(self.LG(f'ds_write_b128 v{60 + rg}, {v(192 + rg * 16 + 4 * c, 4)} offset:{4096 * c}', 'xsw', tag='xs',
                                   lds_w=lambda w, t, c=c: [(XS + w * 16384 + c * 4096, XS + w * 16384 + c * 4096 + 4096)]))
        e('s_waitcnt lgkmcnt(0)\ns_barrier')

    def dma12_setup(self, m):
        ks, half = (m % 32) // 2, m & 1
        if m < 32:
            so = ks * 32 * 3584
        else:
            so = ks * 32 * 8192 + 128 * half
        return [I(f's_add_u32 m0, s{sRING}, {pos12(m)}'), I(f's_mov_b32 s{sSO}, {so}')]

    def dma12(self, m, pc):
        s = (SRD_WU if m & 1 else SRD_WG) if m < 32 else SRD_WQ
        vo = (vD1 if m < 32 else vD2) + pc
        o = pos12(m) + 1024 * pc
        return self.VM(f'buffer_load_dwordx4 v{vo}, {srd(s)}, s{sSO} offen offset:{1024 * pc} lds', ('u12', m), tag=('u12', m),
                       lds_w=lambda w, t: [(ring12(w) + o, ring12(w) + o + 1024)])

    def aread12(self, m, t):
        o = pos12(m)
        r = aA + 4 * ((4 * m + t) % 6)
        return [self.LG(f'ds_read_b64_tr_b16 {a_(r + 2 * u, 2)}, v{vPA12 + t} offset:{o + 512 * u}', ('a12', m, t),
                        lds_r=lambda w, tr: [(ring12(w) + o, ring12(w) + o + 4096)]) for u in range(2)]

    def bread12(self, ks, qb):
        k = ks % 16
        o = qb * 16384 + k * 1024
        return self.LG(f'ds_read_b128 {a_(aB + 16 * (ks & 1) + 4 * qb, 4)}, v{vXB + (k & 1)} offset:{o}', ('b12', ks),
                       lds_r=lambda w, t: [(XS + o, XS + o + 1024)])

    def kdma(self, c, pc, so):
        o = (c & 3) * 16384 + 1024 * pc
        return self.VM(f'buffer_load_dwordx4 v{vKD + pc}, {srd(SRD_K)}, s{so} offen offset:{1024 * pc} lds', ('K', c), tag=('K', c),
                       lds_w=lambda w, t: [(o + w * 4096, o + w * 4096 + 1024)])

    def vdma(self, c, pc, so):
        o = VBASE + ((c + 3) & 3) * 16384 + 1024 * pc
        return self.VM(f'buffer_load_dwordx4 v{vVD + (pc & 1)}, {srd(SRD_V)}, s{so} offen offset:{1024 * pc} lds', ('V', c), tag=('V', c),
                       lds_w=lambda w, t: [(o + w * 4096, o + w * 4096 + 1024)])

    def glu_epilogue(self):
        out = []
        for kap in range(2):
            for qb in range(4):
                for tt in range(2):
                    t = 2 * kap + tt
                    g = vGATE + (t * 4 + qb) * 4
                    u = aUP + (t * 4 + qb) * 4
                    h = vH + (kap * 4 + qb) * 4 + 2 * tt
                    out += [I(f'v_mul_f32 v{g + r}, s{sC1}, v{g + r}') for r in range(4)]
                    for r in range(4):
                        out += [I(f'v_exp_f32 v{g + r}, v{g + r}'), I(f'v_accvgpr_read_b32 v{vUT + r}, a{u + r}')]
                    out += [I(f'v_add_f32 v{g + r}, 1.0, v{g + r}') for r in range(4)]
                    out += [I(f'v_rcp_f32 v{g + r}, v{g + r}') for r in range(4)]
                    out += [I(f'v_mul_f32 v{g + r}, v{g + r}, v{vUT + r}') for r in range(4)]
                    out += [I(f'v_cvt_pk_bf16_f32 v{h}, v{g}, v{g + 1}'), I(f'v_cvt_pk_bf16_f32 v{h + 1}, v{g + 2}, v{g + 3}')]
        return out

    def gemm12(self):
        p = self.p
        p.add(self.wait(vm=('u12', 0)))
        for qb in range(4):
            p.add(self.bread12(0, qb))
        for t in range(4):
            p.add(self.aread12(0, t))
        p.add(self.dma12_setup(5))
        p.add(self.wait(vm=('u12', 1), lg=('a12', 0, 1)))
        for ph in range(2):
            self.stamp('P1' if ph == 0 else 'P2')
            mf, fx = [], {}
            for m in range(32 * ph, 32 * ph + 32):
                ks, half = m // 2, m & 1
                for t in range(4):
                    g0 = len(mf)
                    A = a_(aA + 4 * ((4 * m + t) % 6), 4)
                    for qb in range(4):
                        if ph == 0:
                            d = (v(vGATE + (t * 4 + qb) * 4, 4) if half == 0 else a_(aUP + (t * 4 + qb) * 4, 4))
                        else:
                            d = v(vACC + ((4 * half + t) * 4 + qb) * 4, 4)
                        c = '0' if ks % 16 == 0 else d
                        mf.append(I(f'v_mfma_f32_16x16x32_bf16 {d}, {A}, {a_(aB + 16 * (ks & 1) + 4 * qb, 4)}, {c}'))
                    if m + 1 < 64:
                        fx[g0] = self.aread12(m + 1, t)
                    fx[g0 + 1] = []
                    if m + 5 < 64:
                        fx[g0 + 1].append(self.dma12(m + 5, t))
                    if m in (60, 61):
                        fx[g0 + 1].append(self.kdma(m - 61, t, sKA if m == 60 else sKB))
                    if half == 0 and ks + 1 < 32:
                        fx[g0 + 1].append(self.bread12(ks + 1, t))
                    if t == 3:
                        if m + 6 < 64:
                            fx[g0 + 2] = self.dma12_setup(m + 6)
                        if m == 58:
                            fx[g0 + 2] = [I(f's_lshl_b32 s{sKB}, s{sW}, 12'), I(f's_add_u32 s{sKA}, s{sKB}, {(2048 - 32) * 256}'),
                                          I(f's_and_b32 s{sKA}, s{sKA}, 0x7ffff'), I(f's_add_u32 s{sKB}, s{sKB}, {32 * 256}')]
                        if m == 59:
                            fx[g0 + 2] = [I(f's_add_u32 m0, s{sM0K}, {3 * 16384}'), I('s_barrier')]
                        if m == 60:
                            fx[g0 + 2] = [I(f's_mov_b32 m0, s{sM0K}')]
                    if m == 34 and t == 0:
                        fx[g0 + 2] = [I(f's_lshl_b32 s{sT0}, s{sRL}, 2'), I(f's_add_u32 s{sT0}, s{sT0}, s{sW}')]
                        fx[g0 + 3] = [I(f's_lshl_b32 s{sT0}, s{sT0}, 10'), I(f'v_and_b32 v{vD1}, 7, v{vLANE}')]
                    if m == 34 and t == 1:
                        fx[g0 + 2] = [I(f'v_lshlrev_b32 v{vD1}, 7, v{vD1}'),
                                      self.VM(f'buffer_load_dword a252, v{vD1}, {srd(SRD_K)}, s{sT0} offen', 'warm')]
                    if m == 34 and t == 2:
                        fx[g0 + 2] = [self.VM(f'buffer_load_dword a253, v{vD1}, {srd(SRD_V)}, s{sT0} offen', 'warm')]
                    if t == 1:
                        fx[g0 + 3] = [self.wait(lg=('a12', m, 3))]
                    if t == 3 and m + 1 < 64:
                        fx[g0 + 3] = [self.wait(vm=('u12', m + 2) if m + 2 < 64 else None, lg=('a12', m + 1, 1))]
            bg = self.glu_epilogue() if ph == 1 else []
            p.add(fill(mf, fx, bg, bg_start=4, bg_end=len(mf) - 32))

    def kread(self, j, e):
        h = j + 1
        c, half = (h - 1) >> 1, (h - 1) & 1
        o = (c & 3) * 16384 + half * 8192 + (e >> 2) * 4096
        return self.LG(f'ds_read_b128 {a_(aKF + 4 * (e & 3), 4)}, v{vKA + (e & 3)} offset:{o}', ('kf', j, e),
                       lds_r=lambda w, t: [(o, o + 4096)])

    def vread(self, j, e, u):
        h = j - 1
        c, half = (h + 1) >> 1, (h + 1) & 1
        o = ((c + 3) & 3) * 16384 + half * 8192 + u * 4096
        return self.LG(f'ds_read_b64_tr_b16 {a_(aVF + 4 * (e & 3) + 2 * u, 2)}, v{vVA + e} offset:{o}', ('vf', j, e),
                       lds_r=lambda w, t: [(VBASE + o, VBASE + o + 4096)])

    def qk(self, j, e, czero=False):
        kb, ks = e >> 2, e & 3
        out = []
        for qb in range(4):
            d = v(vS + 32 * ((j + 1) & 1) + (kb * 4 + qb) * 4, 4)
            c = d if ks else ('0' if czero else v(vNEGM + 4 * qb, 4))
            out.append(I(f'v_mfma_f32_16x16x32_bf16 {d}, {a_(aKF + 4 * (e & 3), 4)}, {v(vQ + (ks * 4 + qb) * 4, 4)}, {c}'))
        return out

    def pv(self, j, e):
        out = []
        for qb in range(4):
            d = a_(aO + (e * 4 + qb) * 4, 4)
            out.append(I(f'v_mfma_f32_16x16x32_bf16 {d}, {a_(aVF + 4 * (e & 3), 4)}, {v(vP + 16 * ((j - 1) & 1) + 4 * qb, 4)}, {"0" if j == 1 else d}'))
        return out

    def lsum(self, j, qb):
        d = a_(aL + 4 * qb, 4)
        return I(f'v_mfma_f32_16x16x32_bf16 {d}, {a_(aONE, 4)}, {v(vP + 16 * ((j - 1) & 1) + 4 * qb, 4)}, {"0" if j == 1 else d}')

    def step(self, j, extra=None, steady=False):
        extra = extra or {}
        hasq, hasv, hass = j + 1 <= 63, j >= 1, j <= 63
        out = []
        n = j >> 1
        for e in range(8):
            mf = (self.qk(j, e) if hasq else []) + (self.pv(j, e) if hasv else [])
            j2, e2 = (j, e + 2) if e < 6 else (j + 1, e - 6)
            rd = []
            if j2 + 1 <= 63:
                rd.append(lambda: self.kread(j2, e2))
            if 1 <= j2 <= 64:
                rd += [lambda: self.vread(j2, e2, 0), lambda: self.vread(j2, e2, 1)]
            s = vS + 32 * (j & 1) + 4 * e
            pr = vP + 16 * (j & 1) + 4 * (e & 3) + 2 * (e >> 2)
            ex = [I(f'v_exp_f32 v{s + r}, v{s + r}') for r in range(4)] if hass else []
            cv = [I(f'v_cvt_pk_bf16_f32 v{pr + r}, v{s + 2 * r}, v{s + 2 * r + 1}') for r in range(2)] if hass else []

            def misc():
                m = []
                if e < 4 and j % 2 == 0 and n + 2 <= 31 and j <= 63:
                    m.append(self.kdma(n + 2, e, sKA if n % 2 == 0 else sKB))
                if e < 4 and j % 2 == 1 and n + 2 <= 32:
                    m.append(self.vdma(n + 2, e, sKB if n % 2 == 0 else sKA))
                if e == 7 and j % 2 == 0 and n + 2 <= 32:
                    m.append(I(f's_add_u32 m0, s{sM0K}, {VBASE + ((n + 2 + 3) & 3) * 16384}'))
                if e == 7 and j % 2 == 1 and n + 3 <= 32:
                    new, old = (sKB, sKA) if n % 2 == 0 else (sKA, sKB)
                    m.append(I(f's_add_u32 s{new}, s{old}, 16384'))
                    if n + 3 <= 31:
                        m.append(I(f's_add_u32 m0, s{sM0K}, {((n + 3) & 3) * 16384}'))
                if (e, 'misc') in extra:
                    m += extra[(e, 'misc')]()
                return m

            def lwait():
                j1, e1 = (j, e + 1) if e < 7 else (j + 1, 0)
                tags = []
                if j1 + 1 <= 63:
                    tags.append(('kf', j1, e1))
                if 1 <= j1 <= 64:
                    tags.append(('vf', j1, e1))
                return [self.wait(lg=tags[-1])] if tags else []

            if len(mf) == 8:
                g = {0: [ex[0]], 2: [ex[1]], 4: [ex[2]], 6: [ex[3]]}
                g[1] = [f() for f in rd[:2]]
                g[3] = [f() for f in rd[2:]] + [cv[0]]
                g[5] = misc()
                g[7] = [cv[1]] + lwait()
            else:
                g = {0: ex[0:1] + [f() for f in rd[:1]]}
                g[1] = ex[1:2] + [f() for f in rd[1:2]]
                g[2] = ex[2:3] + [f() for f in rd[2:]] + cv[0:1]
                g[3] = ex[3:4] + misc()
                g[3] += (lwait() or ([I('s_nop 0')] if hass else [])) + cv[1:2]
            for k, m in enumerate(mf):
                out.append(m)
                out += g.get(k, [])
            if e & 1:
                tail = []
                if e == 5 and j % 2 == 1 and j <= 63:
                    tail += [I('s_waitcnt vmcnt(8)') if steady else self.wait(vm=('V', n + 1)), I('s_barrier')]
                if (e, 'sum') in extra:
                    tail += extra[(e, 'sum')]()
                if hasv:
                    out.append(self.lsum(j, e >> 1))
                out += tail
        self.p.add(out)

    def attn_prologue(self):
        p, e = self.p, self.p.e
        self.stamp('Qepi')
        e('s_barrier')
        e(f'''v_accvgpr_read_b32 v{vVD}, a{aPARK + 3}
        s_add_u32 m0, s{sM0K}, {VBASE + 3 * 16384}
        v_xor_b32 v{vVD + 1}, 128, v{vVD}''')
        for pc in range(4):
            p.add(self.vdma(0, pc, sKA))
        e(f's_add_u32 s{sKA}, s{sKB}, 16384\ns_add_u32 m0, s{sM0K}, 16384\nv_lshlrev_b32 v{vL16}, 4, v{vLANE}')
        for pc in range(4):
            p.add(self.kdma(1, pc, sKA))
        e(f's_add_u32 m0, s{sM0K}, {VBASE}\ns_nop 0')
        for pc in range(4):
            p.add(self.vdma(1, pc, sKB))
        e(f'v_mov_b32 v{vTMP}, 0')
        for hf in range(2):
            p.add(self.VM(f'buffer_store_dword v{vTMP}, off, {srd(SRD_WS)}, s{sFLAG} offset:{128 * hf} sc1', 'hst'))
        for kap in range(2):
            for qb in range(4):
                p.add(self.VM(f'buffer_store_dwordx4 {v(vH + (kap * 4 + qb) * 4, 4)}, v{vL16}, {srd(SRD_WS)}, s{sH0 + kap} offen offset:{1024 * qb} sc1', 'hst'))
        for ks in range(4):
            for qb in range(4):
                q = vQ + (ks * 4 + qb) * 4
                x, y = vACC + ((2 * ks) * 4 + qb) * 4, vACC + ((2 * ks + 1) * 4 + qb) * 4
                e(f'''v_cvt_pk_bf16_f32 v{q}, v{x}, v{x + 1}
                v_cvt_pk_bf16_f32 v{q + 1}, v{x + 2}, v{x + 3}
                v_cvt_pk_bf16_f32 v{q + 2}, v{y}, v{y + 1}
                v_cvt_pk_bf16_f32 v{q + 3}, v{y + 2}, v{y + 3}''')
            if ks:
                self.qswap(ks - 1)
        e(f'v_accvgpr_read_b32 v{vKA}, a{aPARK + 2}\nv_accvgpr_read_b32 v{vVA}, a{aPARK + 1}')
        self.qswap(3)
        for t in range(1, 4):
            e(f'v_xor_b32 v{vKA + t}, {64 * t}, v{vKA}')
        for t in range(1, 8):
            e(f'v_xor_b32 v{vVA + t}, {32 * t}, v{vVA}')
        e(f'v_mov_b32 v{vTMP}, 0x3f803f80')
        for r in range(4):
            e(f'v_accvgpr_write_b32 a{aONE + r}, v{vTMP}')
        e('L_attn:')
        self.stamp('Aprol')
        p.add(self.wait(vm=('K', 0)))
        e('s_barrier')
        for k in range(2):
            p.add(self.kread(-1, k))
        for k in range(8):
            if k + 2 < 8:
                p.add(self.kread(-1, k + 2))
            p.add(self.wait(lg=('kf', -1, k)))
            p.add(self.qk(-1, k, czero=True))
        e(f's_mov_b32 s{sSO2}, s{sKA}\ns_add_u32 s{sKA}, s{sKA}, 16384\ns_mov_b32 s{sKB}, s{sSO2}\ns_add_u32 m0, s{sM0K}, {2 * 16384}')
        p.add(self.kread(0, 0))
        p.add(self.kread(0, 1))
        e('s_nop 1')
        for qb in range(4):
            s0, s1, m = vS + 4 * qb, vS + 16 + 4 * qb, vNEGM + 4 * qb
            e(f'''v_max3_f32 v{m}, v{s0}, v{s0 + 1}, v{vMINIT + qb}
            v_max3_f32 v{m + 1}, v{s0 + 2}, v{s0 + 3}, v{s1}
            v_max3_f32 v{m}, v{m}, v{s1 + 1}, v{s1 + 2}
            v_max3_f32 v{m}, v{m}, v{m + 1}, v{s1 + 3}''')
        for op in ('v_permlane32_swap_b32', 'v_permlane16_swap_b32'):
            for qb in range(4):
                e(f'v_mov_b32 v{vNEGM + 4 * qb + 1}, v{vNEGM + 4 * qb}')
            for qb in range(4):
                e(f'{op} v{vNEGM + 4 * qb}, v{vNEGM + 4 * qb + 1}')
            for qb in range(4):
                e(f'v_max_f32 v{vNEGM + 4 * qb}, v{vNEGM + 4 * qb}, v{vNEGM + 4 * qb + 1}')
        for qb in range(4):
            m = vNEGM + 4 * qb
            e(f'v_sub_f32 v{m}, 0, v{m}')
            for r in range(1, 4):
                e(f'v_mov_b32 v{m + r}, v{m}')
        for kb in range(2):
            for qb in range(4):
                for r in range(4):
                    s = vS + (kb * 4 + qb) * 4 + r
                    e(f'v_add_f32 v{s}, v{s}, v{vNEGM + 4 * qb}')
        p.add(self.wait(vm=('V', 0), lg=('kf', 0, 0)))
        e('s_barrier')

    def qswap(self, ks):
        e = self.p.e
        for op in ('v_permlane32_swap_b32', 'v_permlane16_swap_b32'):
            for qb in range(4):
                q = vQ + (ks * 4 + qb) * 4
                e(f'{op} v{q}, v{q + 2}\n{op} v{q + 1}, v{q + 3}')

    def flag_add(self, label, sidx, base):
        return [I(f's_or_b32 s{sT0}, s{sW}, s{sMODE}' if base == 0 else f's_mov_b32 s{sT0}, s{sW}'),
                I(f's_cmp_lg_u32 s{sT0}, 0'),
                I(f's_cbranch_scc1 {label}'),
                I(f's_lshl_b32 s{sT0}, s{sidx}, 2'),
                I(f'v_mov_b32 v{vTMP}, 1'),
                I('s_mov_b64 exec, 1'),
                I(f'buffer_atomic_add v{vTMP}, off, {srd(SRD_DBG)}, s{sT0} offset:{base}'),
                I('s_mov_b64 exec, -1'),
                I(f'{label}:')]

    def poll(self, label, reg, base):
        p = self.p
        p.e(f'''v_readfirstlane_b32 s{sT0}, v{reg}
        s_lshl_b32 s{sT1}, s{sRB}, 2
        s_cmp_ge_u32 s{sT0}, 8
        s_cbranch_scc1 {label}_ok''')
        p.mark('off')
        p.e(f'''s_mov_b32 s{sT2}, 0x200000
        {label}_spin:
        s_sub_u32 s{sT2}, s{sT2}, 1
        s_cbranch_scc1 {label}_ok
        s_sleep 2
        buffer_load_dword v{reg}, off, {srd(SRD_DBG)}, s{sT1} offset:{base} sc1
        s_waitcnt vmcnt(0)
        v_readfirstlane_b32 s{sT0}, v{reg}
        s_nop 0
        s_cmp_ge_u32 s{sT0}, 8
        s_cbranch_scc0 {label}_spin''')
        p.mark('on')
        p.e(f'{label}_ok:')

    def attention(self):
        p = self.p
        self.stamp('Attn')
        for j in range(8):
            extra = {}
            if j == 5:
                extra[(7, 'sum')] = lambda: self.flag_add('L_hflag', sR, 0)
            self.step(j, extra)
        self.stamp('Aloop')
        p.e(f's_mov_b32 s{sCNT}, 5\n.p2align 3\nL_loop:')
        p.mark('loop', 6)
        for j in range(8, 16):
            extra = {}
            if j == 15:
                extra[(7, 'sum')] = lambda: [I(f's_sub_u32 s{sCNT}, s{sCNT}, 1'), I('s_cbranch_scc0 L_loop')]
            self.step(j, extra, steady=True)
        p.mark('endloop')
        self.stamp('Alast')
        sh = lambda t: (t[0], t[1] + 20) if t[0] in ('K', 'V') else ((t[0], t[1] + 40, t[2]) if t[0] in ('kf', 'vf') else t)
        self.vm = [sh(t) if isinstance(t, tuple) else t for t in self.vm[-16:]]
        self.lg = [sh(t) if isinstance(t, tuple) else t for t in self.lg[-16:]]
        for j in range(56, 65):
            extra = {}
            if j == 56:
                extra[(5, 'misc')] = lambda: [I(f's_lshl_b32 s{sT1}, s{sRB}, 2')]
                extra[(6, 'misc')] = lambda: [self.VM(f'buffer_load_dword v{vTMP + 1}, off, {srd(SRD_DBG)}, s{sT1} sc1', 'hpoll')]
            if j == 57:
                extra[(1, 'sum')] = lambda: [I(f's_lshl_b32 s{sT2}, s{sRL}, 2'), I(f's_add_u32 s{sT2}, s{sT2}, s{sW}')]
                extra[(3, 'sum')] = lambda: [I(f's_lshl_b32 s{sT3}, s{sT2}, 13'), I(f's_lshl_b32 s{sT0}, s{sG}, 19')]
                extra[(4, 'misc')] = lambda: [I(f's_add_u32 s{sT3}, s{sT3}, s{sT0}'), I(f'v_lshlrev_b32 v{vTMP + 2}, 7, v{vLANE}')]
                extra[(5, 'misc')] = lambda: [I(f's_lshr_b32 s{sT2}, s2, 3'), I(f's_lshl_b32 s{sT2}, s{sT2}, 2')]
                extra[(6, 'misc')] = lambda: [self.VM(f'buffer_load_dword a252, v{vTMP + 2}, {srd(SRD_WO)}, s{sT3} offen', 'warm'),
                                              I(f's_add_u32 s{sT2}, s{sT2}, s{sW}')]
                extra[(7, 'sum')] = lambda: [I(f's_mul_i32 s{sT3}, s{sT2}, 14336')]
            if j == 58:
                extra[(4, 'misc')] = lambda: [I(f's_add_u32 s{sT0}, s{sT3}, 6144')]
                extra[(5, 'misc')] = lambda: [self.VM(f'buffer_load_dword a253, v{vTMP + 2}, {srd(SRD_WD)}, s{sT3} offen', 'warm')]
                extra[(6, 'misc')] = lambda: [self.VM(f'buffer_load_dword a254, v{vTMP + 2}, {srd(SRD_WD)}, s{sT0} offen', 'warm')]
            if j == 59:
                extra[(7, 'sum')] = lambda: self.hwarm()
            if j == 62:
                extra[(0, 'misc')] = lambda: self.dma45_setup(0)
                for k in range(4):
                    extra[(1 + k, 'misc')] = lambda k=k: [self.dma45(0, k)]
                extra[(5, 'misc')] = lambda: self.dma45_setup(1)
            if j == 63:
                for k in range(4):
                    extra[(k, 'misc')] = lambda k=k: [self.dma45(1, k)]
                extra[(7, 'misc')] = lambda: self.dma45_setup(2)
            if j == 64:
                for k in range(4):
                    extra[(k, 'misc')] = lambda k=k: [self.dma45(2, k)] + (self.dma45_setup(3) if k == 3 else [])
                for k in range(3):
                    extra[(4 + k, 'misc')] = lambda k=k: [self.dma45(3, k)]
            self.step(j, extra)

    def hwarm(self):
        keep, self.p = self.p, Prog()
        self.poll('L_hp', vTMP + 1, 0)
        items, self.p = self.p.items, keep
        items += [I(f's_mul_i32 s{sT0}, s{sRB}, {HROW}'), I(f's_lshl_b32 s{sT1}, s{sCB}, 2'), I(f's_add_u32 s{sT1}, s{sT1}, s{sW}'),
                  I(f's_mul_i32 s{sT1}, s{sT1}, 7168'), I(f's_add_u32 s{sT0}, s{sT0}, s{sT1}'),
                  I(f'v_min_u32 v{vTMP}, 55, v{vLANE}'), I(f'v_lshlrev_b32 v{vTMP}, 7, v{vTMP}')]
        items.append(self.VM(f'buffer_load_dword a255, v{vTMP}, {srd(SRD_WS)}, s{sT0} offen sc1', 'warm'))
        return items

    def dma45_setup(self, m):
        _, _, off = pos45(m)
        if m < 32:
            first = [I(f's_lshl_b32 s{sSBASE}, s{sG}, 19'), I(f's_lshl_b32 s{sT0}, s{sW}, 8'), I(f's_add_u32 s{sSBASE}, s{sSBASE}, s{sT0}')] if m == 0 else []
            return first + [I(f's_add_u32 m0, s{sR4}, {off}'), I(f's_add_u32 s{sSO}, s{sSBASE}, {(m & 15) * 32768 + 128 * (m >> 4)}')]
        first = []
        if m == 32:
            first = [I(f's_mul_i32 s{sSO2}, s{sW}, {14 * 32768}'), I(f's_lshl_b32 s{sT0}, s{sCB}, 7'), I(f's_add_u32 s{sSO2}, s{sSO2}, s{sT0}'),
                     I(f's_mul_i32 s{sHSO}, s{sRB}, {HROW}'), I(f's_mul_i32 s{sT0}, s{sW}, {14 * 4096}'), I(f's_add_u32 s{sHSO}, s{sHSO}, s{sT0}')]
        else:
            first = [I(f's_add_u32 s{sHSO}, s{sHSO}, 4096')]
        return first + [I(f's_add_u32 m0, s{sR4}, {off}'), I(f's_add_u32 s{sSO}, s{sSO2}, {(m - 32) * 32768}')]

    def dma45(self, m, pc):
        _, _, off = pos45(m)
        o = VBASE + off + 1024 * pc
        return self.VM(f'buffer_load_dwordx4 v{vD45 + pc}, {srd(SRD_WO if m < 32 else SRD_WD)}, s{sSO} offen offset:{1024 * pc} lds', ('u45', m),
                       tag=('u45', m), lds_w=lambda w, t: [(o + 8192 * w, o + 8192 * w + 1024)])

    def hload(self, m, qb):
        return self.VM(f'buffer_load_dwordx4 {a_(aHF + 16 * (m - 32) + 4 * qb, 4)}, v{vL16}, {srd(SRD_WS)}, s{sHSO} offen offset:{1024 * qb} sc1', ('u45', m))

    def aread45(self, m, t):
        st, imm, off = pos45(m)
        r = aA + 4 * ((4 * m + t) % 6)
        return [self.LG(f'ds_read_b64_tr_b16 {a_(r + 2 * u, 2)}, v{vPA45 + 4 * st + t} offset:{imm + 2048 * u}', ('a45', m, t),
                        lds_r=lambda w, tr: [(VBASE + off + 8192 * w, VBASE + off + 8192 * w + 4096)]) for u in range(2)]

    def bread4(self, m, qb):
        o = qb * 16384 + (m & 15) * 1024
        return self.LG(f'ds_read_b128 {v(vB4 + 16 * (m % 3) + 4 * qb, 4)}, v{vL16} offset:{o}', ('b4', m), lds_r=lambda w, t: [(o, o + 1024)])

    def o_epilogue(self):
        p, e = self.p, self.p.e
        self.stamp('Oepi')
        inv = lambda qb: vNEGM + 2 * qb
        e('s_nop 6')
        for qb in range(4):
            e(f'v_accvgpr_read_b32 v{inv(qb) + 1}, a{aL + 4 * qb}')
        for qb in range(4):
            e(f'v_rcp_f32 v{inv(qb)}, v{inv(qb) + 1}')
        e(f'''v_add_f32 v{vTMP + 2}, v{inv(0) + 1}, v{inv(1) + 1}
        v_add_f32 v{vTMP + 2}, v{vTMP + 2}, v{inv(2) + 1}
        v_add_f32 v{vTMP + 2}, v{vTMP + 2}, v{inv(3) + 1}
        v_cmp_nge_f32 vcc, {f32(2.0 ** 40)}, v{vTMP + 2}
        v_and_b32 v201, 3, v{vLANE}
        v_lshlrev_b32 v201, 13, v201
        s_cmp_lg_u64 vcc, 0
        s_cselect_b32 s{sT0}, 1, 0
        s_lshl_b32 s{sT1}, s{sW}, 2
        s_add_u32 s{sT1}, s{sT1}, {VBASE + 8192 - 16}
        v_mov_b32 v200, s{sT0}
        v_add_u32 v201, s{sT1}, v201''')
        p.add(self.LG('ds_write_b32 v201, v200', 'flagw', tag='flag',
                      lds_w=lambda w, t: [(VBASE + 8192 * k + 8192 - 16, VBASE + 8192 * k + 8192) for k in range(4)]))
        e(f's_lshl_b32 s{sT0}, s{sW}, 12\nv_add_u32 v202, s{sT0}, v{vL16}')
        k = 0
        for ks in range(4):
            for qb in range(4):
                t = vS + 16 * (k % 4)
                k += 1
                for tt in range(2):
                    for r in range(4):
                        e(f'v_accvgpr_read_b32 v{t + 4 * tt + r}, a{aO + ((2 * ks + tt) * 4 + qb) * 4 + r}')
                for r in range(4):
                    e(f'v_pk_mul_f32 {v(t + 2 * r, 2)}, {v(t + 2 * r, 2)}, {v(inv(qb), 2)} op_sel_hi:[1,0]')
                for r in range(4):
                    e(f'v_cvt_pk_bf16_f32 v{t + 8 + r}, v{t + 2 * r}, v{t + 2 * r + 1}')
                o = qb * 16384 + ks * 1024
                p.add(self.LG(f'ds_write_b128 v202, {v(t + 8, 4)} offset:{o}', 'oxw', tag='ox',
                              lds_w=lambda w, tr, o=o: [(o + w * 4096, o + w * 4096 + 1024)]))
        e(f'''v_accvgpr_read_b32 v{vPA45}, a{aPARK}
        v_mov_b32 v203, s{sR4}''')
        for t in range(1, 4):
            e(f'v_xor_b32 v{vPA45 + t}, {32 * t}, v{vPA45}')
        for t in range(4):
            e(f'v_add_u32 v{vPA45 + 4 + t}, {64 * K1}, v{vPA45 + t}')
        e('s_waitcnt lgkmcnt(0)\ns_barrier')
        p.add(self.LG('ds_read_b128 v[204:207], v203 offset:8176', 'flagr',
                      lds_r=lambda w, t: [(VBASE + 8192 * w + 8176, VBASE + 8192 * w + 8192)]))
        for qb in range(4):
            p.add(self.bread4(0, qb))
        p.add(self.wait(vm=('u45', 0)))
        for t in range(4):
            p.add(self.aread45(0, t))
        p.add(self.wait(lg='flagr'))
        for qb in range(4):
            p.add(self.bread4(1, qb))
        e(f'''v_or3_b32 v204, v204, v205, v206
        v_or_b32 v204, v204, v207
        s_nop 0
        v_readfirstlane_b32 s{sT0}, v204
        s_nop 0
        s_andn2_b32 s{sT0}, s{sT0}, s{sMODE}
        s_cbranch_scc1 L_fallback''')
        p.add(self.dma45(3, 3))
        p.add(self.dma45_setup(4))
        e('s_nop 0')
        for pc in range(4):
            p.add(self.dma45(4, pc))
        p.add(self.dma45_setup(5))
        p.add(self.wait(vm=('u45', 1), lg=('a45', 0, 1)))

    def unit45(self, m, mf, fx, early):
        NU = 46
        poll_at = 33 if early else 41
        for t in range(4):
            g0 = len(mf)
            A = a_(aA + 4 * ((4 * m + t) % 6), 4)
            for qb in range(4):
                if m < 32:
                    d = v(vACC + ((4 * (m >> 4) + t) * 4 + qb) * 4, 4)
                    B, c = v(vB4 + 16 * (m % 3) + 4 * qb, 4), ('0' if m % 16 == 0 else d)
                else:
                    d = v(self.acc5(t, qb), 4)
                    B, c = a_(aHF + 16 * (m - 32) + 4 * qb, 4), ('0' if m == 32 else d)
                mf.append(I(f'v_mfma_f32_16x16x32_bf16 {d}, {A}, {B}, {c}'))
            if m + 1 < NU:
                fx[g0] = self.aread45(m + 1, t)
            fx[g0 + 1] = []
            if m + 5 < NU:
                fx[g0 + 1].append(self.dma45(m + 5, t))
                if m + 5 >= 32:
                    fx[g0 + 1].append(self.hload(m + 5, t))
            if m + 2 < 32:
                fx[g0 + 1].append(self.bread4(m + 2, t))
            x = []
            if 17 <= m < 25 and t == 0:
                x += self.s_convert(m - 17)
            if 17 <= m < 25 and t == 3:
                x += self.s_store(m - 17)
            if m == 32:
                for k in (8 + 2 * t, 9 + 2 * t):
                    x += self.s_convert(k) + self.s_store(k)
            if m == 34 and t == 0:
                x += [I('s_barrier')]
            if m == poll_at - 1 and t == 0:
                x += self.spoll_issue()
            if m == poll_at and t == 0:
                x += [self.wait(vm='spoll')] + self.spoll_check('e' if early else 'o')
            if early and poll_at <= m < poll_at + 4:
                x += self.sp_load(4 * (m - poll_at) + t)
            if not early and m == poll_at:
                for k in range(4 * t, 4 * t + 4):
                    x += self.sp_load(k)
            if m == 26:
                x += self.final_loads(t)
            if t == 3 and m + 6 < NU:
                x += self.dma45_setup(m + 6)
            fx[g0 + 2] = x
            if t == 1:
                fx[g0 + 3] = [self.wait(lg=('a45', m, 3))]
            if t == 3 and m + 1 < NU:
                tag = ('u45', min(m + 2, NU - 1))
                fx[g0 + 3] = [self.wait(vm=tag, lg=('a45', m + 1, 1))]
                for hf in range(2):
                    n = self.vm.count(('sst', hf))
                    if n == 8 and hf not in self.flagged and self.after(self.vm, ('sst', hf)) > self.after(self.vm, tag):
                        self.flagged.add(hf)
                        fx[g0 + 3] += [I(f'v_mov_b32 v{vTMP}, 1'),
                                       self.VM(f'buffer_store_dword v{vTMP}, off, {srd(SRD_WS)}, s{sFLAG} offset:{128 * hf} sc1', 'flag')]

    def gemm45(self):
        p = self.p
        self.stamp('P4')
        self.flagged = set()
        mf, fx = [], {}
        for m in range(32):
            if m == 16:
                p.add(fill(mf, fx))
                mf, fx = [], {}
                self.stamp('P4b')
            self.unit45(m, mf, fx, False)
        p.add(fill(mf, fx))
        self.stamp('P5')
        p.e(f's_bitcmp1_b32 s{sCB}, 0\ns_cbranch_scc0 L_even')
        state = (list(self.vm), list(self.lg), set(self.flagged), self.nstamp, list(self.names))
        keep = []
        for early in (False, True):
            self.vm, self.lg, self.flagged, self.nstamp, self.names = list(state[0]), list(state[1]), set(state[2]), state[3], list(state[4])
            if early:
                p.e('L_even:')
            skip = early != self.trace_even
            if skip:
                p.mark('off')
            mf, fx = [], {}
            for m in range(32, 46):
                if m in (37, 41):
                    p.add(fill(mf, fx))
                    mf, fx = [], {}
                    self.stamp('P5_%d' % m)
                self.unit45(m, mf, fx, early)
            assert self.flagged == {0, 1}
            p.add(fill(mf, fx))
            if not early:
                p.e('s_branch L_final')
            if skip:
                p.mark('on')
            keep.append(list(self.vm))
        p.e('L_final:')
        self.vm, self.vm_alt = keep

    def spoll_issue(self):
        return [I(f's_lshl_b32 s{sT3}, s{sRB}, 3'), I(f's_add_u32 s{sT3}, s{sT3}, s{sCB}'), I(f's_lshl_b32 s{sKB}, s{sT3}, 7'),
                I(f's_add_u32 s{sKB}, s{sKB}, {FOFF}'), I(f'v_and_b32 v24, 7, v{vLANE}'), I('v_lshlrev_b32 v24, 2, v24'),
                I(f's_lshl_b32 s{sH0}, s{sT3}, 16'), I(f's_lshl_b32 s{sT3}, s{sW}, 11'), I(f's_add_u32 s{sH0}, s{sH0}, s{sT3}'),
                I(f's_add_u32 s{sH0}, s{sH0}, {SOFF}'),
                self.VM(f'buffer_load_dword v25, v24, {srd(SRD_WS)}, s{sKB} offen sc1', 'spoll')]

    def spoll_check(self, sfx):
        lab = 'L_sp' + sfx
        return [I('v_cmp_ne_u32 vcc, 1, v25'), I(f's_cbranch_vccz {lab}_ok'), ('off2',),
                I(f's_mov_b32 s{sT2}, 0x200000'), I(f'{lab}_spin:'), I(f's_sub_u32 s{sT2}, s{sT2}, 1'), I(f's_cbranch_scc1 {lab}_ok'),
                I('s_sleep 1'), I(f'buffer_load_dword v25, v24, {srd(SRD_WS)}, s{sKB} offen sc1'), I('s_waitcnt vmcnt(0)'),
                I('v_cmp_ne_u32 vcc, 1, v25'), I(f's_cbranch_vccnz {lab}_spin'), ('on2',), I(f'{lab}_ok:')]

    def sp_load(self, k):
        g, half = k >> 1, k & 1
        r = vSP(k)
        out = [I(f's_add_u32 s{sH0}, s{sH0}, 8192')] if (half == 0 and g) else []
        return out + [self.VM(f'buffer_load_dwordx4 {v(r, 4)}, v{vL16}, {srd(SRD_WS)}, s{sH0} offen offset:{1024 * half} sc1', ('sp', g))]

    def acc5(self, t, qb):
        return 32 + (t * 4 + qb) * 4

    def s_convert(self, k):
        cbh, qb, half = k >> 3, (k >> 1) & 3, k & 1
        x = vACC + ((4 * cbh + 2 * half) * 4 + qb) * 4
        y = x + 16
        t = 120 + 4 * (k & 1)
        return [I(f'v_cvt_pk_bf16_f32 v{t}, v{x}, v{x + 1}'), I(f'v_cvt_pk_bf16_f32 v{t + 1}, v{x + 2}, v{x + 3}'),
                I(f'v_cvt_pk_bf16_f32 v{t + 2}, v{y}, v{y + 1}'), I(f'v_cvt_pk_bf16_f32 v{t + 3}, v{y + 2}, v{y + 3}')]

    def s_store(self, k):
        cbh, qb, half = k >> 3, (k >> 1) & 3, k & 1
        out = []
        if k == 0:
            out += [I(f's_lshl_b32 s{sH1}, s{sR}, 19'), I(f's_lshl_b32 s{sT0}, s{sW}, 17'), I(f's_lshl_b32 s{sT1}, s{sG}, 13'),
                    I(f's_add_u32 s{sH1}, s{sH1}, s{sT0}'), I(f's_add_u32 s{sH1}, s{sH1}, s{sT1}'), I(f's_add_u32 s{sH1}, s{sH1}, {SOFF}')]
        elif k % 4 == 0:
            out += [I(f's_add_u32 s{sH1}, s{sH1}, {4096 if k % 8 else 65536 - 4096}')]
        out.append(self.VM(f'buffer_store_dwordx4 {v(120 + 4 * (k & 1), 4)}, v{vL16}, {srd(SRD_WS)}, s{sH1} offen offset:{(qb & 1) * 2048 + half * 1024} sc1', ('sst', cbh)))
        return out

    def final_loads(self, t):
        out = []
        if t == 0:
            out += [I(f'v_and_b32 v10, 15, v{vLANE}'), I(f'v_lshrrev_b32 v11, 4, v{vLANE}'), I('v_lshlrev_b32 v11, 3, v11'),
                    I('v_lshl_or_b32 v10, v10, 10, v11'),
                    I(f's_lshl_b32 s{sKA}, s{sRB}, 16'), I(f's_lshl_b32 s{sT0}, s{sW}, 14'), I(f's_lshl_b32 s{sT1}, s{sCB}, 7'),
                    I(f's_add_u32 s{sKA}, s{sKA}, s{sT0}'), I(f's_add_u32 s{sKA}, s{sKA}, s{sT1}')]
        out.append(self.VM(f'buffer_load_dwordx2 {v(12 + 2 * t, 2)}, v10, {srd(SRD_X)}, s{sKA} offen offset:{32 * t}', 'xres'))
        return out

    def final(self):
        p, e = self.p, self.p.e
        self.stamp('P6')
        e(f's_lshl_b32 s{sT0}, s{sW}, 12\nv_add_u32 v24, s{sT0}, v{vL16}\ns_lshl_b32 s{sT0}, s{sW}, 14\nv_add_u32 v25, s{sT0}, v{vL16}\ns_nop 3')
        for qb in range(4):
            for t in range(4):
                o = qb * 16384 + t * 1024
                p.add(self.LG(f'ds_write_b128 v24, {v(self.acc5(t, qb), 4)} offset:{o}', 'redw', tag='red',
                              lds_w=lambda w, tr, o=o: [(o + w * 4096, o + w * 4096 + 1024)]))
        e('s_waitcnt lgkmcnt(0)\ns_barrier')
        for src in range(4):
            for t in range(4):
                o = src * 4096 + t * 1024
                p.add(self.LG(f'ds_read_b128 {v(32 + (src * 4 + t) * 4, 4)}, v25 offset:{o}', ('redr', src),
                              lds_r=lambda w, tr, o=o: [(o + w * 16384, o + w * 16384 + 1024)]))
        p.add(self.wait(lg=('redr', 1)))
        for n in range(8):
            e(f'v_pk_add_f32 {v(32 + 2 * n, 2)}, {v(32 + 2 * n, 2)}, {v(48 + 2 * n, 2)}')
        p.add(self.wait(lg=('redr', 3)))
        for n in range(8):
            e(f'v_pk_add_f32 {v(64 + 2 * n, 2)}, {v(64 + 2 * n, 2)}, {v(80 + 2 * n, 2)}')
        for n in range(8):
            e(f'v_pk_add_f32 {v(32 + 2 * n, 2)}, {v(32 + 2 * n, 2)}, {v(64 + 2 * n, 2)}')
        for n in range(16):
            e(f'v_mul_f32 v{48 + n}, s{sC1}, v{32 + n}')
        for n in range(16):
            e(f'v_exp_f32 v{48 + n}, v{48 + n}\nv_mul_f32 v{32 + n}, s{sC2}, v{32 + n}')
        for n in range(16):
            e(f'v_add_f32 v{48 + n}, 1.0, v{48 + n}')
        for n in range(16):
            e(f'v_rcp_f32 v{48 + n}, v{48 + n}')
        for n in range(16):
            e(f'v_mul_f32 v{32 + n}, v{32 + n}, v{48 + n}')
        self.stamp('ssum')
        for g in range(8):
            p.add(self.wait(vm=('sp', g)))
            dst = 64 if g == 0 else 80
            for n in range(8):
                r = vSP(2 * g) + n
                e(f'v_lshlrev_b32 v{dst + 2 * n}, 16, v{r}\nv_and_b32 v{dst + 2 * n + 1}, 0xffff0000, v{r}')
            if g:
                for n in range(8):
                    e(f'v_pk_add_f32 {v(64 + 2 * n, 2)}, {v(64 + 2 * n, 2)}, {v(80 + 2 * n, 2)}')
        for n in range(8):
            e(f'v_lshlrev_b32 v{80 + 2 * n}, 16, v{12 + n}\nv_and_b32 v{80 + 2 * n + 1}, 0xffff0000, v{12 + n}')
        for n in range(8):
            e(f'v_pk_fma_f32 {v(64 + 2 * n, 2)}, {v(64 + 2 * n, 2)}, {v(32 + 2 * n, 2)}, {v(80 + 2 * n, 2)}')
        for n in range(8):
            e(f'v_cvt_pk_bf16_f32 v{96 + n}, v{64 + 2 * n}, v{64 + 2 * n + 1}')
        for t in range(4):
            p.add(self.VM(f'buffer_store_dwordx2 {v(96 + 2 * t, 2)}, v10, {srd(SRD_OUT)}, s{sKA} offen offset:{32 * t}', 'out'))

    def fallback(self):
        p, e = self.p, self.p.e
        p.mark('off')
        e(f'''L_fallback:
        s_mov_b32 s{sMODE}, 1
        s_waitcnt vmcnt(0) lgkmcnt(0)
        s_barrier
        v_and_b32 v10, 15, v{vLANE}
        v_lshrrev_b32 v11, 4, v{vLANE}
        v_lshlrev_b32 v11, 4, v11
        v_lshl_or_b32 v10, v10, 8, v11
        s_mov_b32 s{sSO}, 0
        L_maxloop:''')
        for ks in range(4):
            e(f'buffer_load_dwordx4 {v(160 + 4 * ks, 4)}, v10, {srd(SRD_K)}, s{sSO} offen offset:{64 * ks}')
        e('s_waitcnt vmcnt(0)')
        for ks in range(4):
            for qb in range(4):
                d = v(vS + 4 * qb, 4)
                e(f'v_mfma_f32_16x16x32_bf16 {d}, {v(160 + 4 * ks, 4)}, {v(vQ + (ks * 4 + qb) * 4, 4)}, {d if ks else 0}')
        e(f's_add_u32 s{sSO}, s{sSO}, 4096\ns_nop 7')
        for qb in range(4):
            s = vS + 4 * qb
            e(f'v_max3_f32 v{vMINIT + qb}, v{s}, v{s + 1}, v{vMINIT + qb}\nv_max3_f32 v{vMINIT + qb}, v{s + 2}, v{s + 3}, v{vMINIT + qb}')
        e(f'''s_cmp_lt_u32 s{sSO}, 0x80000
        s_cbranch_scc1 L_maxloop
        v_accvgpr_read_b32 v{vKA}, a{aPARK + 2}
        v_accvgpr_read_b32 v{vVA}, a{aPARK + 1}
        s_lshl_b32 s{sKB}, s{sW}, 12
        s_add_u32 s{sKA}, s{sKB}, {(2048 - 32) * 256}
        s_and_b32 s{sKA}, s{sKA}, 0x7ffff
        s_add_u32 s{sKB}, s{sKB}, {32 * 256}''')
        for t in range(1, 4):
            e(f'v_xor_b32 v{vKA + t}, {64 * t}, v{vKA}')
        for t in range(1, 8):
            e(f'v_xor_b32 v{vVA + t}, {32 * t}, v{vVA}')
        save = list(self.vm)
        for base, fn, c, so in ((3 * 16384, self.kdma, -1, sKA), (0, self.kdma, 0, sKB), (VBASE + 3 * 16384, self.vdma, 0, sKA),
                                (VBASE, self.vdma, 1, sKB), (16384, self.kdma, 1, sKA)):
            if (fn, c) == (self.kdma, 1):
                e(f's_add_u32 s{sKA}, s{sKB}, 16384')
            e(f's_add_u32 m0, s{sM0K}, {base}\ns_nop 0')
            for pc in range(4):
                p.add(fn(c, pc, so))
        self.vm = save
        e('s_waitcnt vmcnt(0)\ns_branch L_attn')
        p.mark('on')

    def profile_out(self):
        e = self.p.e
        self.stamp('End')
        e(f'''s_memrealtime s[72:73]
        s_lshl_b32 s{sT0}, s2, 2
        s_add_u32 s{sT0}, s{sT0}, s{sW}
        s_lshl_b32 s{sT0}, s{sT0}, 7
        s_add_u32 s{sT0}, s{sT0}, {28 << 20}
        s_waitcnt lgkmcnt(0)
        s_mov_b64 exec, 1''')
        for k, r in enumerate([100, 72] + [STAMP0 + k for k in range(self.nstamp)]):
            e(f'v_mov_b32 v2, s{r}\nbuffer_store_dword v2, off, {srd(SRD_WS)}, s{sT0} offset:{4 * k}')

    def build(self):
        self.setup()
        self.stamp('LN')
        self.layernorm()
        self.gemm12()
        self.attn_prologue()
        self.attention()
        self.o_epilogue()
        self.gemm45()
        self.final()
        if self.prof:
            self.profile_out()
        self.p.e('s_endpgm')
        self.fallback()
        self.p.e('L_end:')
        return self.p


HEADER = open(__file__.rsplit('/', 1)[0] + '/header.txt' if '/' in __file__ else 'header.txt').read()


def render(prog):
    k = NAME + '_kernel'
    return HEADER + f'''; @launch grid=(256,1,1) block=(256,1,1) lds=163840
.amdgcn_target "amdgcn-amd-amdhsa--gfx950"
.text
.globl {k}
.p2align 8
.type {k},@function
{k}:
''' + prog.text() + f''' s_endpgm
.section .rodata,"a"
.p2align 6
.amdhsa_kernel {k}
  .amdhsa_next_free_vgpr 512
  .amdhsa_next_free_sgpr 102
  .amdhsa_accum_offset 256
  .amdhsa_group_segment_fixed_size 0
  .amdhsa_kernarg_size 96
  .amdhsa_user_sgpr_count 2
  .amdhsa_user_sgpr_kernarg_segment_ptr 1
  .amdhsa_system_sgpr_workgroup_id_x 1
.end_amdhsa_kernel
'''


if __name__ == '__main__':
    prof = '--prof' in sys.argv
    out = [a for a in sys.argv[1:] if not a.startswith('--')][0]
    other = Gen(prof=prof, trace_even=True).build()
    errs = check(other.trace())
    g = Gen(prof=prof)
    prog = g.build()
    assert other.text() == prog.text()
    tr = prog.trace()
    errs += check(tr)
    for x in errs[:40]:
        print('ERR', x)
    print(len(errs), 'checker findings')
    marks = cycles(tr)
    prev = ('start', 0)
    for m in marks:
        print('%-6s %7d' % (prev[0], m[1] - prev[1]))
        prev = m
    print('total issue-model cycles', marks[-1][1])
    open(out, 'w').write(render(prog) + ('; stamps: ' + ' '.join(g.names) + '\n' if prof else ''))
```

```python
import math, struct, sys
from asmlib import I, Prog, fill, check, cycles

NAME = 'recurrent_scan__gqa_block_cached__glu_gated_glu__prompt'
K1 = 1024
LNSTART, LNEVERY = 100, 11
FLAG1_AT = 36
SAMPLE_AT = 37
CHECK_AT = 41
ABL = set()
RT = False
SPREAD = 1
ONLY = None
GX = 2


def f32(x):
    return '0x%08x' % struct.unpack('<I', struct.pack('<f', x))[0]


C_SCALE = math.log2(math.e) / math.sqrt(128.0)
SQRT128 = math.sqrt(128.0)

SRD_X, SRD_K, SRD_V, SRD_WQ, SRD_WO, SRD_WG, SRD_WU, SRD_WD, SRD_OUT, SRD_WS, SRD_DBG, SRD_CODE = [28 + 4 * i for i in range(12)]
sW, sG, sR, sRB, sCB, sMODE, sCNT = 76, 77, 78, 79, 80, 81, 82
sRING, sSO, sKA, sKB, sM0K, sT0, sT1, sT2, sT3 = 83, 84, 85, 86, 87, 88, 89, 90, 91
sH0, sH1, sHSO, sSBASE, sR4, sC1, sC2, sSO2 = 92, 93, 94, 95, 96, 97, 98, 99
sWI = 72
sRL, sFLAG = 3, 74
STAMP0 = 4


def srd(b):
    return 's[%d:%d]' % (b, b + 3)


def v(a, n=1):
    return 'v%d' % a if n == 1 else 'v[%d:%d]' % (a, a + n - 1)


def a_(a, n=1):
    return 'a%d' % a if n == 1 else 'a[%d:%d]' % (a, a + n - 1)


vLANE = 1
vPA12 = 2
vD1 = 6
vD2 = 10
vXB = 14
vKD = 16
vUT = 20
vMINIT = 24
vD45 = 28
vVA = 2
vKA = 10
vVD = 14
vL16 = 20
vTMP = 21
vH = 32
vP = 32
vGATE = 64
vQ = 64
vACC = 128
vS = 128
vNEGM = 192
vPA45 = 2
aUP = 0
aB = 192
aA = 224
aO, aL, aONE, aKF, aVF = 0, 128, 144, 148, 164
aPARK = 248
aHF = [80, 96, 112, 180, 196, 212, 228, 128, 148, 164, 0, 16, 32, 48]
NPRE = 7
vPA45S = [2, 6]
NTM = 3
GROUPS45 = [(m, t) for m in range(46 - NTM) for t in range(4)] + [(m, t) for t in range(4) for m in range(46 - NTM, 46)]
H_OEPI, H_P4B = 3, 2
vA4 = 96
sXO = 73
sWA, sWB = 75, 73


def oreg(db, qb, n=4, r=0):
    return a_((db * 4 + qb) * 4 + r, n) if db < 5 else v(208 + ((db - 5) * 4 + qb) * 4 + r, n)


vB4 = 32


def vSP(k):
    return 128 + 4 * k


XS = 96 * K1
VBASE = 64 * K1
HOFF, SOFF, FOFF = 0, 8 << 20, 24 << 20
HROW = 56 * 4096


def ring12(w):
    return (w & 1) * 8 * K1 + (48 * K1 if w < 2 else 0)


SLOT12 = {0: 16 * K1, 1: 32 * K1, 2: 0}


def pos12(m):
    return SLOT12[(m // 2) % 3] + 4096 * (m & 1)


def pos45(m):
    p = m % 6
    if p < 2:
        return 1, 4096 * p, lambda w: VBASE + 8192 * w + 64 * K1 + 4096 * p
    o = (0 if p < 4 else 32 * K1) + 4096 * (p & 1)
    return 0, o, lambda w: VBASE + 8192 * w + o


def issue45(m):
    return [m + 5] if m + 5 < 46 else []


def sprinkle(body, mem, start, every):
    out, k = [], 0
    for n, ins in enumerate(body):
        out.append(ins)
        if k < len(mem) and n >= start and (n - start) % every == 0:
            out += mem[k]()
            k += 1
    while k < len(mem):
        out += mem[k]()
        k += 1
    return out


class Gen:
    def __init__(self, prof=False, dump=None, trace_even=False):
        self.trace_even = trace_even
        self.p = Prog()
        self.prof, self.dump = prof, dump
        self.vm = []
        self.vm_alt = None
        self.lg = []
        self.nstamp = 0
        self.only = ONLY
        self.names = []

    def VM(self, text, key, **kw):
        self.vm.append(key)
        if self.vm_alt is not None:
            self.vm_alt.append(key)
        return I(text, **kw)

    def LG(self, text, key, **kw):
        self.lg.append(key)
        return I(text, **kw)

    def after(self, log, tag):
        idx = max(i for i, t in enumerate(log) if t == tag)
        return len(log) - 1 - idx

    def wait(self, vm=None, lg=None):
        s = 's_waitcnt'
        if vm is not None:
            s += ' vmcnt(%d)' % min([self.after(log, vm) for log in (self.vm, self.vm_alt) if log is not None] + [63])
        if lg is not None:
            s += ' lgkmcnt(%d)' % min(self.after(self.lg, lg), 15)
        return I(s)

    def stamp_items(self, name):
        keep, self.p = self.p, Prog()
        self.stamp(name)
        items, self.p = self.p.items, keep
        return items

    def stamp(self, name):
        self.p.mark('phase', name)
        if self.prof and (self.only is None or name in self.only):
            s = STAMP0 + self.nstamp
            self.nstamp += 1
            self.names.append(name)
            assert s < 26
            self.p.e('s_waitcnt lgkmcnt(0)\n%s s[26:27]\ns_waitcnt lgkmcnt(0)\ns_mov_b32 s%d, s26' % ('s_memrealtime' if RT else 's_memtime', s))
            if name in ('Aloop', 'Alast') and self.only is not None and len(self.only) < 18:
                self.p.e('s_memrealtime s[26:27]\ns_waitcnt lgkmcnt(0)\ns_mov_b32 s%d, s26' % (24 if name == 'Aloop' else 25))

    def setup(self):
        e = self.p.e
        e('s_cmp_ge_u32 s2, 256\ns_cbranch_scc1 L_end')
        for reg, off in ((SRD_X, 0), (SRD_WG, 48), (SRD_WU, 56), (SRD_WQ, 24), (SRD_K, 8), (SRD_V, 16), (SRD_WO, 32),
                         (SRD_WD, 64), (SRD_OUT, 72), (SRD_DBG, 80), (SRD_WS, 88)):
            e('s_load_dwordx2 s[%d:%d], s[0:1], %d' % (reg, reg + 1, off))
        if self.prof:
            e(('s_memrealtime' if RT else 's_memtime') + ' s[4:5]\ns_memrealtime s[100:101]')
            self.nstamp = 1
            self.names.append('start')
        e(f'''s_getpc_b64 s[{SRD_CODE}:{SRD_CODE + 1}]
        L_pc:
        s_mov_b32 s{SRD_CODE + 2}, L_end-L_pc
        s_mov_b32 s{SRD_CODE + 3}, 0x20000
        v_and_b32 v51, 7, v0
        v_lshrrev_b32 v128, 6, v0
        v_lshlrev_b32 v51, 7, v51
        s_lshr_b32 s{sT1}, s2, 3
        v_lshl_or_b32 v51, v128, 10, v51
        s_lshl_b32 s{sT1}, s{sT1}, 12''')
        self.p.add(self.VM(f'buffer_load_dword a252, v51, {srd(SRD_CODE)}, s{sT1} offen', 'warm'))
        e(f'''v_and_b32 v{vLANE}, 63, v0
        s_and_b32 s{sG}, s2, {8 // GX - 1}
        v_readfirstlane_b32 s{sW}, v128''')
        if GX == 2:
            e(f'''s_lshl_b32 s{sG}, s{sG}, 1
            s_bfe_u32 s{sT0}, s2, 0x10003
            s_add_u32 s{sG}, s{sG}, s{sT0}
            s_lshr_b32 s{sRL}, s2, 4
            s_bfe_u32 s{sT0}, s2, 0x10002
            s_lshl_b32 s{sT0}, s{sT0}, 4
            s_add_u32 s{sR}, s{sRL}, s{sT0}''')
        else:
            e(f's_lshr_b32 s{sR}, s2, 3\ns_lshr_b32 s{sRL}, s2, 3')
        for reg, size in ((SRD_X, 2 << 20), (SRD_WG, 512 * 3584), (SRD_WU, 512 * 3584), (SRD_WQ, 4 << 20), (SRD_WO, 4 << 20),
                          (SRD_WD, 1792 * 1024), (SRD_OUT, 2 << 20), (SRD_DBG, 256), (SRD_WS, 32 << 20)):
            e('s_mov_b32 s%d, 0x%x\ns_mov_b32 s%d, 0x20000' % (reg + 2, size, reg + 3))
        e(f'''v_and_b32 v129, 15, v{vLANE}
        v_lshrrev_b32 v130, 4, v{vLANE}
        v_lshlrev_b32 v131, 4, v129
        v_lshl_or_b32 v131, v130, 10, v131
        s_lshl_b32 s{sT0}, s{sR}, 16
        s_lshl_b32 s{sT1}, s{sW}, 14
        s_add_u32 s{sT0}, s{sT0}, s{sT1}
        s_mov_b32 s{sKA}, s{sT0}''')
        e(f'''v_lshrrev_b32 v132, 3, v{vLANE}
        v_bfe_u32 v133, v{vLANE}, 1, 2
        v_and_b32 v134, 1, v130
        v_xor_b32 v134, v133, v134
        v_and_b32 v135, 1, v{vLANE}
        v_lshlrev_b32 v135, 4, v135
        v_lshl_or_b32 v136, v134, 5, v135
        s_mul_i32 s{sT0}, s{sG}, 448
        s_and_b32 s{sT1}, s{sG}, 1
        s_lshl_b32 s{sT2}, s{sT1}, 6
        s_sub_u32 s{sT0}, s{sT0}, s{sT2}
        s_lshl_b32 s{sT2}, s{sW}, 7
        s_add_u32 s{sT2}, s{sT0}, s{sT2}
        v_mul_u32_u24 v137, 3584, v132
        v_add3_u32 v{vD1}, v137, v136, s{sT2}
        v_xor_b32 v138, 64, v136
        v_add3_u32 v{vD1 + 1}, v137, v138, s{sT2}
        v_add_u32 v{vD1 + 1}, {8 * 3584 - 1024}, v{vD1 + 1}
        v_add_u32 v{vD1 + 2}, {16 * 3584 - 2048}, v{vD1}
        v_add_u32 v{vD1 + 3}, {16 * 3584 - 2048}, v{vD1 + 1}
        s_and_b32 s{sRING}, s{sW}, 1
        s_lshl_b32 s{sRING}, s{sRING}, 13
        s_cmp_lt_u32 s{sW}, 2
        s_cselect_b32 s{sT3}, {48 * K1}, 0
        s_add_u32 s{sRING}, s{sRING}, s{sT3}''')
        e(f'''s_lshl_b32 s{sKB}, s{sRL}, 2
        s_add_u32 s{sKB}, s{sKB}, s{sW}
        s_mul_i32 s{sT1}, s{sKB}, {GX}
        v_lshrrev_b32 v139, 2, v{vLANE}
        v_min_u32 v140, {GX - 1}, v139
        v_add_u32 v140, s{sT1}, v140
        v_and_b32 v141, 3, v{vLANE}
        v_lshlrev_b32 v141, 7, v141
        v_mul_u32_u24 v140, 3584, v140
        v_add3_u32 v50, v140, v141, s{sT0}
        v_and_b32 v142, 7, v{vLANE}
        v_lshlrev_b32 v142, 7, v142
        s_lshl_b32 s{sT1}, s{sKB}, 13
        s_lshl_b32 s{sT2}, s{sG}, 10
        s_add_u32 s{sT1}, s{sT1}, s{sT2}
        v_add_u32 v52, s{sT1}, v142''')
        e(f'''s_mov_b32 s{SRD_K + 3}, 0x20000
        s_mov_b32 s{SRD_V + 3}, 0x20000
        s_mov_b32 s{sMODE}, 0
        s_and_b32 s{sRB}, s2, 7
        s_xor_b32 s{sRB}, s{sRB}, 4
        s_lshl_b32 s{sRB}, s{sRB}, 2
        s_lshr_b32 s{sT0}, s2, 6
        s_add_u32 s{sRB}, s{sRB}, s{sT0}
        s_bfe_u32 s{sCB}, s2, 0x30003
        s_lshl_b32 s{sM0K}, s{sW}, 12
        s_lshl_b32 s{sR4}, s{sW}, 13
        s_add_u32 s{sR4}, s{sR4}, {VBASE}''')
        e(f'''s_lshl_b32 s{sT0}, s{sG}, 2
        s_add_u32 s{sT0}, s{sT0}, s{sW}
        s_lshl_b32 s{sT0}, s{sT0}, 8
        v_lshlrev_b32 v137, 13, v132
        v_add3_u32 v{vD2}, v137, v136, s{sT0}
        v_add3_u32 v{vD2 + 1}, v137, v138, s{sT0}
        v_add_u32 v{vD2 + 1}, {8 * 8192 - 1024}, v{vD2 + 1}
        v_add_u32 v{vD2 + 2}, {16 * 8192 - 2048}, v{vD2}
        v_add_u32 v{vD2 + 3}, {16 * 8192 - 2048}, v{vD2 + 1}''')
        e(f'''v_xor_b32 v134, v133, v130
        v_lshl_or_b32 v134, v134, 5, v135
        v_lshl_or_b32 v{vD45}, v132, 10, v134
        v_add_u32 v{vD45 + 1}, 7168, v{vD45}
        v_add_u32 v{vD45 + 2}, {2 * 7168}, v{vD45}
        v_add_u32 v{vD45 + 3}, {3 * 7168}, v{vD45}''')
        e(f'''v_lshrrev_b32 v146, 2, v129
        v_and_b32 v147, 3, v129
        v_lshlrev_b32 v147, 3, v147
        v_and_b32 v148, 1, v130
        v_lshrrev_b32 v149, 3, v129
        v_lshl_or_b32 v149, v148, 1, v149
        v_lshl_or_b32 v150, v148, 2, v146
        v_lshl_or_b32 v149, v149, 5, v147
        v_lshl_or_b32 v150, v150, 5, v147
        v_lshl_add_u32 v151, v130, 3, v146
        v_lshl_add_u32 v152, v130, 2, v146
        v_lshl_or_b32 v153, v151, 7, v149
        v_add_u32 v{vPA12}, s{sRING}, v153
        v_lshl_or_b32 v153, v152, 7, v149
        v_add_u32 v153, s{sR4}, v153
        v_lshl_or_b32 v154, v152, 8, v150
        v_add_u32 v154, {VBASE}, v154
        v_accvgpr_write_b32 a{aPARK}, v153
        v_accvgpr_write_b32 a{aPARK + 1}, v154''')
        for t in range(1, 4):
            e(f'v_xor_b32 v{vPA12 + t}, {32 * t}, v{vPA12}')
        e(f'''v_xor_b32 v155, v129, v130
        v_lshlrev_b32 v155, 4, v155
        v_lshl_or_b32 v156, v129, 8, v155
        v_accvgpr_write_b32 a{aPARK + 2}, v156
        v_lshl_or_b32 v{vKD}, v130, 8, v155
        v_xor_b32 v{vKD + 1}, 64, v{vKD}
        v_xor_b32 v{vKD + 2}, 128, v{vKD}
        v_xor_b32 v{vKD + 3}, 192, v{vKD}
        v_lshrrev_b32 v156, 1, v129
        v_xor_b32 v156, v156, v130
        v_lshl_or_b32 v156, v156, 5, v135
        v_lshl_or_b32 v156, v130, 8, v156
        v_accvgpr_write_b32 a{aPARK + 3}, v156
        v_lshl_or_b32 v156, v130, 8, v155
        v_add_u32 v{vXB}, {XS}, v156
        v_xor_b32 v{vXB + 1}, 64, v{vXB}
        v_and_b32 v156, 7, v129
        v_xor_b32 v156, v156, v130
        v_lshlrev_b32 v156, 4, v156
        v_lshl_or_b32 v156, v147, 5, v156
        v_lshl_or_b32 v156, v146, 10, v156
        s_lshl_b32 s{sT0}, s{sW}, 14
        s_add_u32 s{sT0}, s{sT0}, {XS}
        v_add_u32 v60, s{sT0}, v156
        v_xor_b32 v61, 64, v60
        v_xor_b32 v62, 128, v60
        v_xor_b32 v63, 192, v60''')
        for q in range(4):
            e(f'v_mov_b32 v{vMINIT + q}, 0xff800000')
        e(f'''s_mul_i32 s{sT0}, s{sG}, 7
        s_and_b32 s{sT1}, s{sG}, 1
        s_sub_u32 s{sT2}, s{sT0}, s{sT1}
        s_lshl_b32 s{sT3}, s{sW}, 1
        s_add_u32 s{sT2}, s{sT2}, s{sT3}
        s_mul_i32 s{sH0}, s{sR}, {HROW}
        s_lshl_b32 s{sT3}, s{sT2}, 12
        s_add_u32 s{sH0}, s{sH0}, s{sT3}
        s_add_u32 s{sH1}, s{sH0}, 4096
        s_add_u32 s{sT3}, s{sT2}, 1
        s_cmp_lt_i32 s{sT2}, s{sT0}
        s_cselect_b32 s{sH0}, 0x40000000, s{sH0}
        s_add_u32 s{sT0}, s{sT0}, 7
        s_cmp_ge_i32 s{sT3}, s{sT0}
        s_cselect_b32 s{sH1}, 0x40000000, s{sH1}
        s_lshl_b32 s{sHSO}, s{sR}, 10
        s_lshl_b32 s{sT0}, s{sW}, 8
        s_lshl_b32 s{sT1}, s{sG}, 2
        s_add_u32 s{sHSO}, s{sHSO}, s{sT0}
        s_add_u32 s{sHSO}, s{sHSO}, s{sT1}
        s_add_u32 s{sHSO}, s{sHSO}, {FOFF}
        s_mov_b32 s{sC1}, {f32(-SQRT128)}
        s_mov_b32 s{sC2}, {f32(C_SCALE)}
        s_add_u32 s{sT1}, s{sKA}, 4096
        s_add_u32 s{sT2}, s{sKA}, 8192
        s_add_u32 s{sT3}, s{sKA}, 12288
        s_mov_b32 s{sT0}, s{sKA}
        s_waitcnt lgkmcnt(0)''')
        self.stamp('karg')
        for rg in range(4):
            for c in range(4):
                r = 192 + (rg * 4 + c) * 4
                self.p.add(self.VM(f'buffer_load_dwordx4 {v(r, 4)}, v131, {srd(SRD_X)}, s{sT0 + rg} offen offset:{256 * c}', ('x', rg)))
        self.stamp('xiss')
        e(f'''s_mov_b32 s{sWI}, s{sKB}
        s_mov_b32 s{sFLAG}, s{sHSO}
        s_lshl_b32 s{sT0}, s{sG}, 19
        s_add_u32 s{SRD_K}, s{SRD_K}, s{sT0}
        s_addc_u32 s{SRD_K + 1}, s{SRD_K + 1}, 0
        s_add_u32 s{SRD_V}, s{SRD_V}, s{sT0}
        s_addc_u32 s{SRD_V + 1}, s{SRD_V + 1}, 0
        s_sub_u32 s{SRD_K + 2}, 0x400000, s{sT0}
        s_sub_u32 s{SRD_V + 2}, 0x400000, s{sT0}''')

    def layernorm(self):
        e = self.p.e
        X = lambda rg, n: 64 + 32 * rg + n
        acc = lambda rg: 32 + 2 * rg
        st = lambda rg: 40 + 2 * rg
        for rg in range(4):
            self.p.add(self.wait(vm=('x', rg)))
            if rg == 0:
                self.stamp('LNc')
                self.p.add(self.VM(f'buffer_load_dword a253, v50, {srd(SRD_WG)}, 0 offen', 'warm'))
                self.p.add(self.VM(f'buffer_load_dword a254, v50, {srd(SRD_WU)}, 0 offen', 'warm'))
            for n in range(16):
                r = 192 + rg * 16 + n
                e(f'v_lshlrev_b32 v{X(rg, 2 * n)}, 16, v{r}\nv_and_b32 v{X(rg, 2 * n + 1)}, 0xffff0000, v{r}')
            e(f'v_pk_add_f32 {v(acc(rg), 2)}, {v(X(rg, 0), 2)}, {v(X(rg, 2), 2)}')
            e(f'v_pk_add_f32 {v(48, 2)}, {v(X(rg, 4), 2)}, {v(X(rg, 6), 2)}')
            for n in range(4, 16, 2):
                e(f'v_pk_add_f32 {v(acc(rg), 2)}, {v(acc(rg), 2)}, {v(X(rg, 2 * n), 2)}')
                e(f'v_pk_add_f32 {v(48, 2)}, {v(48, 2)}, {v(X(rg, 2 * n + 2), 2)}')
            e(f'v_pk_add_f32 {v(acc(rg), 2)}, {v(acc(rg), 2)}, {v(48, 2)}')

        self.stamp('LN2')
        body = []
        e = lambda t: body.extend(I(x.strip()) for x in t.strip().split('\n'))

        def rowsum():
            for rg in range(4):
                e(f'v_add_f32 v{st(rg)}, v{acc(rg)}, v{acc(rg) + 1}')
            for sh in (8, 4, 2, 1):
                for rg in range(4):
                    e(f'v_add_f32_dpp v{st(rg)}, v{st(rg)}, v{st(rg)} row_ror:{sh} row_mask:0xf bank_mask:0xf')
        rowsum()
        for rg in range(4):
            e(f'v_mul_f32 v{st(rg)}, {f32(-1.0 / 512)}, v{st(rg)}')
        for n in range(16):
            for rg in range(4):
                e(f'v_pk_add_f32 {v(X(rg, 2 * n), 2)}, {v(X(rg, 2 * n), 2)}, {v(st(rg), 2)} op_sel_hi:[1,0]')
        for n in range(16):
            for rg in range(4):
                x = v(X(rg, 2 * n), 2)
                e(f'v_pk_mul_f32 {v(acc(rg), 2)}, {x}, {x}' if n == 0 else f'v_pk_fma_f32 {v(acc(rg), 2)}, {x}, {x}, {v(acc(rg), 2)}')
        rowsum()
        e(f'v_mov_b32 v48, {f32(1e-5)}')
        for rg in range(4):
            e(f'v_fmamk_f32 v{st(rg)}, v{st(rg)}, {f32(1.0 / 512)}, v48')
        for rg in range(4):
            e(f'v_rsq_f32 v{st(rg)}, v{st(rg)}')
        for rg in range(4):
            e(f'v_mul_f32 v{st(rg)}, {f32(C_SCALE)}, v{st(rg)}')
        for rg in range(4):
            for n in range(16):
                e(f'v_pk_mul_f32 {v(X(rg, 2 * n), 2)}, {v(X(rg, 2 * n), 2)}, {v(st(rg), 2)} op_sel_hi:[1,0]')
            for n in range(16):
                e(f'v_cvt_pk_bf16_f32 v{192 + rg * 16 + n}, v{X(rg, 2 * n)}, v{X(rg, 2 * n + 1)}')
            for c in range(4):
                body.append(self.LG(f'ds_write_b128 v{60 + rg}, {v(192 + rg * 16 + 4 * c, 4)} offset:{4096 * c}', 'xsw', tag='xs',
                                    lds_w=lambda w, t, c=c: [(XS + w * 16384 + c * 4096, XS + w * 16384 + c * 4096 + 4096)]))
        mem = []
        for m in range(5):
            for pc in range(4):
                mem.append(lambda m=m, pc=pc: [self.dma12(m, pc)] + (self.dma12_setup(m + 1) if pc == 3 else []))
        mem.append(lambda: self.warm_gu(1))
        self.p.add(self.dma12_setup(0))
        self.p.add(sprinkle(body, mem, LNSTART, LNEVERY))
        self.stamp('LNbar')
        self.p.e('s_waitcnt lgkmcnt(0)\ns_barrier')
        self.stamp('P1pre')

    def warm_gu(self, k):
        return [I(f's_mov_b32 s{sT0}, {k * 128 * 3584}'),
                self.VM(f'buffer_load_dword v{53 + k}, v50, {srd(SRD_WG)}, s{sT0} offen', 'warm'),
                self.VM(f'buffer_load_dword v{56 + k}, v50, {srd(SRD_WU)}, s{sT0} offen', 'warm')]

    def warm_q(self, k):
        return [I(f's_mov_b32 s{sT0}, {k * (128 // GX) * 8192}'),
                self.VM(f'buffer_load_dword v{32 + k}, v52, {srd(SRD_WQ)}, s{sT0} offen', 'warm')]

    def dma12_setup(self, m):
        ks, half = (m % 32) // 2, m & 1
        if m < 32:
            so = ks * 32 * 3584
        else:
            so = ks * 32 * 8192 + 128 * half
        return [I(f's_add_u32 m0, s{sRING}, {pos12(m)}'), I(f's_mov_b32 s{sSO}, {so}')]

    def dma12(self, m, pc):
        s = (SRD_WU if m & 1 else SRD_WG) if m < 32 else SRD_WQ
        vo = (vD1 if m < 32 else vD2) + pc
        o = pos12(m) + 1024 * pc
        return self.VM(f'buffer_load_dwordx4 v{vo}, {srd(s)}, s{sSO} offen offset:{1024 * pc} lds', ('u12', m), tag=('u12', m),
                       lds_w=lambda w, t: [(ring12(w) + o, ring12(w) + o + 1024)])

    def aread12(self, m, t):
        o = pos12(m)
        r = aA + 4 * ((4 * m + t) % 6)
        return [self.LG(f'ds_read_b64_tr_b16 {a_(r + 2 * u, 2)}, v{vPA12 + t} offset:{o + 512 * u}', ('a12', m, t),
                        lds_r=lambda w, tr: [(ring12(w) + o, ring12(w) + o + 4096)]) for u in range(2)]

    def bread12(self, ks, qb):
        k = ks % 16
        o = qb * 16384 + k * 1024
        return self.LG(f'ds_read_b128 {a_(aB + 16 * (ks & 1) + 4 * qb, 4)}, v{vXB + (k & 1)} offset:{o}', ('b12', ks),
                       lds_r=lambda w, t: [(XS + o, XS + o + 1024)])

    def kdma(self, c, pc, so):
        o = (c & 3) * 16384 + 1024 * pc
        return self.VM(f'buffer_load_dwordx4 v{vKD + pc}, {srd(SRD_K)}, s{so} offen offset:{1024 * pc} lds', ('K', c), tag=('K', c),
                       lds_w=lambda w, t: [(o + w * 4096, o + w * 4096 + 1024)])

    def vdma(self, c, pc, so):
        o = VBASE + ((c + 3) & 3) * 16384 + 1024 * pc
        return self.VM(f'buffer_load_dwordx4 v{vVD + (pc & 1)}, {srd(SRD_V)}, s{so} offen offset:{1024 * pc} lds', ('V', c), tag=('V', c),
                       lds_w=lambda w, t: [(o + w * 4096, o + w * 4096 + 1024)])

    def glu_epilogue(self):
        out = []
        for kap in range(2):
            for qb in range(4):
                for tt in range(2):
                    t = 2 * kap + tt
                    g = vGATE + (t * 4 + qb) * 4
                    u = aUP + (t * 4 + qb) * 4
                    h = vH + (kap * 4 + qb) * 4 + 2 * tt
                    out += [I(f'v_mul_f32 v{g + r}, s{sC1}, v{g + r}') for r in range(4)]
                    for r in range(4):
                        out += [I(f'v_exp_f32 v{g + r}, v{g + r}'), I(f'v_accvgpr_read_b32 v{vUT + r}, a{u + r}')]
                    out += [I(f'v_fma_f32 v{g + r}, v{g + r}, s{sC2}, s{sC2}') for r in range(4)]
                    out += [I(f'v_rcp_f32 v{g + r}, v{g + r}') for r in range(4)]
                    out += [I(f'v_mul_f32 v{g + r}, v{g + r}, v{vUT + r}') for r in range(4)]
                    out += [I(f'v_cvt_pk_bf16_f32 v{h}, v{g}, v{g + 1}'), I(f'v_cvt_pk_bf16_f32 v{h + 1}, v{g + 2}, v{g + 3}')]
        return out

    def gemm12(self):
        p = self.p
        p.add(self.wait(vm=('u12', 0)))
        for qb in range(4):
            p.add(self.bread12(0, qb))
        for t in range(4):
            p.add(self.aread12(0, t))
        p.add(self.wait(vm=('u12', 1), lg=('a12', 0, 1)))
        for ph in range(2):
            self.stamp('P1' if ph == 0 else 'P2')
            mf, fx = [], {}
            for m in range(32 * ph, 32 * ph + 32):
                ks, half = m // 2, m & 1
                if m in (8, 16, 24):
                    p.add(fill(mf, fx))
                    mf, fx = [], {}
                    self.stamp('P1_%d' % m)
                for t in range(4):
                    g0 = len(mf)
                    A = a_(aA + 4 * ((4 * m + t) % 6), 4)
                    for qb in range(4):
                        if ph == 0:
                            d = (v(vGATE + (t * 4 + qb) * 4, 4) if half == 0 else a_(aUP + (t * 4 + qb) * 4, 4))
                        else:
                            d = v(vACC + ((4 * half + t) * 4 + qb) * 4, 4)
                        c = '0' if ks % 16 == 0 else d
                        mf.append(I(f'v_mfma_f32_16x16x32_bf16 {d}, {A}, {a_(aB + 16 * (ks & 1) + 4 * qb, 4)}, {c}'))
                    if m + 1 < 64:
                        fx[g0] = self.aread12(m + 1, t)
                    fx[g0 + 1] = []
                    if m + 5 < 64:
                        fx[g0 + 1].append(self.dma12(m + 5, t))
                    if m in (60, 61):
                        fx[g0 + 1].append(self.kdma(m - 61, t, sKA if m == 60 else sKB))
                    if half == 0 and ks + 1 < 32:
                        fx[g0 + 1].append(self.bread12(ks + 1, t))
                    if t == 3:
                        if m + 6 < 64:
                            fx[g0 + 2] = self.dma12_setup(m + 6)
                        if m in (2, 6):
                            fx[g0 + 2] += self.warm_gu(2 + (m - 2) // 4)
                        if 9 <= m < 9 + 8 * GX and m % 2 == 1 and (m - 9) // 2 < 4 * GX:
                            fx[g0 + 2] += self.warm_q((m - 9) // 2)
                        if m == 58:
                            fx[g0 + 2] = [I(f's_lshl_b32 s{sKB}, s{sW}, 12'), I(f's_add_u32 s{sKA}, s{sKB}, {(2048 - 32) * 256}'),
                                          I(f's_and_b32 s{sKA}, s{sKA}, 0x7ffff'), I(f's_add_u32 s{sKB}, s{sKB}, {32 * 256}')]
                        if m == 59:
                            fx[g0 + 2] = [I(f's_add_u32 m0, s{sM0K}, {3 * 16384}'), I('s_barrier')]
                        if m == 60:
                            fx[g0 + 2] = [I(f's_mov_b32 m0, s{sM0K}')]
                    if m == 34 and t == 0:
                        fx[g0 + 3] = [I(f's_mul_i32 s{sT0}, s{sWI}, {512 * GX}'), I(f'v_and_b32 v{vD1}, {4 * GX - 1}, v{vLANE}')]
                    if m == 34 and t == 1:
                        fx[g0 + 2] = [I(f'v_lshlrev_b32 v{vD1}, 7, v{vD1}'),
                                      self.VM(f'buffer_load_dword a252, v{vD1}, {srd(SRD_K)}, s{sT0} offen', 'warm')]
                    if m == 34 and t == 2:
                        fx[g0 + 2] = [self.VM(f'buffer_load_dword a253, v{vD1}, {srd(SRD_V)}, s{sT0} offen', 'warm')]
                    if t == 1:
                        fx[g0 + 3] = [self.wait(lg=('a12', m, 3))]
                    if t == 3 and m + 1 < 64:
                        fx[g0 + 3] = [self.wait(vm=('u12', m + 2) if m + 2 < 64 else None, lg=('a12', m + 1, 1))]
            bg = self.glu_epilogue() if ph == 1 else []
            p.add(fill(mf, fx, bg, bg_start=4, bg_end=len(mf) - 32))

    def kread(self, j, e):
        h = j + 1
        c, half = (h - 1) >> 1, (h - 1) & 1
        o = (c & 3) * 16384 + half * 8192 + (e >> 2) * 4096
        return self.LG(f'ds_read_b128 {a_(aKF + 4 * (e & 3), 4)}, v{vKA + (e & 3)} offset:{o}', ('kf', j, e),
                       lds_r=lambda w, t: [(o, o + 4096)])

    def vread(self, j, e, u):
        h = j - 1
        c, half = (h + 1) >> 1, (h + 1) & 1
        o = ((c + 3) & 3) * 16384 + half * 8192 + u * 4096
        return self.LG(f'ds_read_b64_tr_b16 {a_(aVF + 4 * (e & 3) + 2 * u, 2)}, v{vVA + e} offset:{o}', ('vf', j, e),
                       lds_r=lambda w, t: [(VBASE + o, VBASE + o + 4096)])

    def qk(self, j, e, czero=False):
        kb, ks = e >> 2, e & 3
        out = []
        for qb in range(4):
            d = v(vS + 32 * ((j + 1) & 1) + (kb * 4 + qb) * 4, 4)
            c = d if ks else ('0' if czero else v(vNEGM + 4 * qb, 4))
            out.append(I(f'v_mfma_f32_16x16x32_bf16 {d}, {a_(aKF + 4 * (e & 3), 4)}, {v(vQ + (ks * 4 + qb) * 4, 4)}, {c}'))
        return out

    def pv(self, j, e):
        out = []
        for qb in range(4):
            d = oreg(e, qb)
            out.append(I(f'v_mfma_f32_16x16x32_bf16 {d}, {a_(aVF + 4 * (e & 3), 4)}, {v(vP + 16 * ((j - 1) & 1) + 4 * qb, 4)}, {"0" if j == 1 else d}'))
        return out

    def lsum(self, j, qb):
        d = a_(aL + 4 * qb, 4)
        return I(f'v_mfma_f32_16x16x32_bf16 {d}, {a_(aONE, 4)}, {v(vP + 16 * ((j - 1) & 1) + 4 * qb, 4)}, {"0" if j == 1 else d}')

    def step(self, j, extra=None, steady=False):
        extra = extra or {}
        hasq, hasv, hass = j + 1 <= 63, j >= 1, j <= 63
        out = []
        n = j >> 1
        for e in range(8):
            mf = (self.qk(j, e) if hasq else []) + (self.pv(j, e) if hasv else [])
            j2, e2 = (j, e + 2) if e < 6 else (j + 1, e - 6)
            rd = []
            if j2 + 1 <= 63:
                rd.append(lambda: self.kread(j2, e2))
            if 1 <= j2 <= 64:
                rd += [lambda: self.vread(j2, e2, 0), lambda: self.vread(j2, e2, 1)]
            s = vS + 32 * (j & 1) + 4 * e
            pr = vP + 16 * (j & 1) + 4 * (e & 3) + 2 * (e >> 2)
            ex = [I(f'v_exp_f32 v{s + r}, v{s + r}') for r in range(4)] if hass else []
            cv = [I(f'v_cvt_pk_bf16_f32 v{pr + r}, v{s + 2 * r}, v{s + 2 * r + 1}') for r in range(2)] if hass else []

            def misc():
                m = []
                if e < 4 and j % 2 == 0 and n + 2 <= 31 and j <= 63:
                    m.append(self.kdma(n + 2, e, sKA if n % 2 == 0 else sKB))
                if e < 4 and j % 2 == 1 and n + 2 <= 32:
                    m.append(self.vdma(n + 2, e, sKB if n % 2 == 0 else sKA))
                if e == 7 and j % 2 == 0 and n + 2 <= 32:
                    m.append(I(f's_add_u32 m0, s{sM0K}, {VBASE + ((n + 2 + 3) & 3) * 16384}'))
                if e == 7 and j % 2 == 1 and n + 3 <= 32:
                    new, old = (sKB, sKA) if n % 2 == 0 else (sKA, sKB)
                    m.append(I(f's_add_u32 s{new}, s{old}, 16384'))
                    if n + 3 <= 31:
                        m.append(I(f's_add_u32 m0, s{sM0K}, {((n + 3) & 3) * 16384}'))
                if (e, 'misc') in extra:
                    m += extra[(e, 'misc')]()
                return m

            def lwait():
                j1, e1 = (j, e + 1) if e < 7 else (j + 1, 0)
                tags = []
                if j1 + 1 <= 63:
                    tags.append(('kf', j1, e1))
                if 1 <= j1 <= 64:
                    tags.append(('vf', j1, e1))
                return [self.wait(lg=tags[-1])] if tags else []

            if len(mf) == 8:
                g = {0: [ex[0]], 2: [ex[1]], 4: [ex[2]], 6: [ex[3]]}
                g[1] = [f() for f in rd[:2]]
                g[3] = [f() for f in rd[2:]] + [cv[0]]
                g[5] = misc()
                g[7] = [cv[1]] + lwait()
            else:
                g = {0: ex[0:1] + [f() for f in rd[:1]]}
                g[1] = ex[1:2] + [f() for f in rd[1:2]]
                g[2] = ex[2:3] + [f() for f in rd[2:]] + cv[0:1]
                g[3] = ex[3:4] + misc()
                g[3] += (lwait() or ([I('s_nop 0')] if hass else [])) + cv[1:2]
            for k, m in enumerate(mf):
                out.append(m)
                out += g.get(k, [])
            if e & 1:
                tail = []
                if e == 5 and j % 2 == 1 and j <= 63:
                    tail += [I('s_waitcnt vmcnt(9)') if steady else self.wait(vm=('V', n + 1)), I('s_barrier')]
                if e == 5 and j == 0:
                    tail += [self.wait(vm=('V', 0)), I('s_barrier')]
                if (e, 'sum') in extra:
                    tail += extra[(e, 'sum')]()
                if hasv:
                    out.append(self.lsum(j, e >> 1))
                out += tail
        if steady:
            drop = lambda x: isinstance(x, I) and (('bar' in ABL and x.op == 's_barrier') or ('sum' in ABL and x.kind == 'mfma' and a_(aONE, 4) in x.text)
                                                   or ('exp' in ABL and x.kind == 'trans') or ('dma' in ABL and x.kind == 'vmem') or ('ds' in ABL and x.kind == 'ds')
                                                   or ('cvt' in ABL and 'cvt' in x.op) or ('vmw' in ABL and x.kind == 'wait' and x.vm is not None))
            out = [x for x in out if not drop(x)]
        self.p.add(out)

    def attn_prologue(self):
        p, e = self.p, self.p.e
        self.stamp('Qepi')
        e('s_barrier')
        e(f'''v_accvgpr_read_b32 v{vVD}, a{aPARK + 3}
        s_add_u32 m0, s{sM0K}, {VBASE + 3 * 16384}
        v_xor_b32 v{vVD + 1}, 128, v{vVD}
        v_lshlrev_b32 v{vL16}, 4, v{vLANE}
        v_mov_b32 v{vTMP}, 0''')
        mem = []
        for pc in range(4):
            mem.append(lambda pc=pc: [self.vdma(0, pc, sKA)] + ([I(f's_add_u32 s{sKA}, s{sKB}, 16384'), I(f's_add_u32 m0, s{sM0K}, 16384')] if pc == 3 else []))
        for pc in range(4):
            mem.append(lambda pc=pc: [self.kdma(1, pc, sKA)] + ([I(f's_add_u32 m0, s{sM0K}, {VBASE}')] if pc == 3 else []))
        for pc in range(4):
            mem.append(lambda pc=pc: [self.vdma(1, pc, sKB)])
        for hf in range(2):
            mem.append(lambda hf=hf: [self.VM(f'buffer_store_dword v{vTMP}, off, {srd(SRD_WS)}, s{sFLAG} offset:{128 * hf} sc1', 'hst')])
        for kap in range(2):
            for qb in range(4):
                mem.append(lambda kap=kap, qb=qb: [self.VM(f'buffer_store_dwordx4 {v(vH + (kap * 4 + qb) * 4, 4)}, v{vL16}, {srd(SRD_WS)}, s{sH0 + kap} offen offset:{1024 * qb} sc1', 'hst')])
        keep, self.p = self.p, Prog()
        e = self.p.e
        for ks in range(4):
            for qb in range(4):
                q = vQ + (ks * 4 + qb) * 4
                x, y = vACC + ((2 * ks) * 4 + qb) * 4, vACC + ((2 * ks + 1) * 4 + qb) * 4
                e(f'''v_cvt_pk_bf16_f32 v{q}, v{x}, v{x + 1}
                v_cvt_pk_bf16_f32 v{q + 1}, v{x + 2}, v{x + 3}
                v_cvt_pk_bf16_f32 v{q + 2}, v{y}, v{y + 1}
                v_cvt_pk_bf16_f32 v{q + 3}, v{y + 2}, v{y + 3}''')
            if ks:
                self.qswap(ks - 1)
        e(f'v_accvgpr_read_b32 v{vKA}, a{aPARK + 2}\nv_accvgpr_read_b32 v{vVA}, a{aPARK + 1}')
        self.qswap(3)
        for t in range(1, 4):
            e(f'v_xor_b32 v{vKA + t}, {64 * t}, v{vKA}')
        for t in range(1, 8):
            e(f'v_xor_b32 v{vVA + t}, {32 * t}, v{vVA}')
        e(f'v_mov_b32 v{vTMP + 1}, 0x3f803f80')
        for r in range(4):
            e(f'v_accvgpr_write_b32 a{aONE + r}, v{vTMP + 1}')
        body, self.p = self.p.items, keep
        e = self.p.e
        p.add(sprinkle(body, mem[:14], 1, 10))
        self.late_mem = mem[14:]
        self.stamp('Aprol')
        for f in self.late_mem:
            p.add(f())
        e('L_attn:')
        p.add(self.wait(vm=('K', 0)))
        e('s_barrier')
        for k in range(2):
            p.add(self.kread(-1, k))
        for k in range(8):
            if k + 2 < 8:
                p.add(self.kread(-1, k + 2))
            p.add(self.wait(lg=('kf', -1, k)))
            p.add(self.qk(-1, k, czero=True))
        e(f's_mov_b32 s{sSO2}, s{sKA}\ns_add_u32 s{sKA}, s{sKA}, 16384\ns_mov_b32 s{sKB}, s{sSO2}\ns_add_u32 m0, s{sM0K}, {2 * 16384}')
        p.add(self.kread(0, 0))
        p.add(self.kread(0, 1))
        e('s_nop 1')
        for qb in range(4):
            s0, s1, m = vS + 4 * qb, vS + 16 + 4 * qb, vNEGM + 4 * qb
            e(f'''v_max3_f32 v{m}, v{s0}, v{s0 + 1}, v{vMINIT + qb}
            v_max3_f32 v{m + 1}, v{s0 + 2}, v{s0 + 3}, v{s1}
            v_max3_f32 v{m}, v{m}, v{s1 + 1}, v{s1 + 2}
            v_max3_f32 v{m}, v{m}, v{m + 1}, v{s1 + 3}''')
        for op in ('v_permlane32_swap_b32', 'v_permlane16_swap_b32'):
            for qb in range(4):
                e(f'v_mov_b32 v{vNEGM + 4 * qb + 1}, v{vNEGM + 4 * qb}')
            for qb in range(4):
                e(f'{op} v{vNEGM + 4 * qb}, v{vNEGM + 4 * qb + 1}')
            for qb in range(4):
                e(f'v_max_f32 v{vNEGM + 4 * qb}, v{vNEGM + 4 * qb}, v{vNEGM + 4 * qb + 1}')
        for qb in range(4):
            m = vNEGM + 4 * qb
            e(f'v_sub_f32 v{m}, 0, v{m}')
            for r in range(1, 4):
                e(f'v_mov_b32 v{m + r}, v{m}')
        for kb in range(2):
            for qb in range(4):
                for r in range(4):
                    s = vS + (kb * 4 + qb) * 4 + r
                    e(f'v_add_f32 v{s}, v{s}, v{vNEGM + 4 * qb}')
        p.add(self.wait(lg=('kf', 0, 0)))

    def qswap(self, ks):
        e = self.p.e
        for op in ('v_permlane32_swap_b32', 'v_permlane16_swap_b32'):
            for qb in range(4):
                q = vQ + (ks * 4 + qb) * 4
                e(f'{op} v{q}, v{q + 2}\n{op} v{q + 1}, v{q + 3}')

    def flag_add(self, label, sidx, base):
        return [I(f's_or_b32 s{sT0}, s{sW}, s{sMODE}' if base == 0 else f's_mov_b32 s{sT0}, s{sW}'),
                I(f's_cmp_lg_u32 s{sT0}, 0'),
                I(f's_cbranch_scc1 {label}'),
                I(f's_lshl_b32 s{sT0}, s{sidx}, 2'),
                I(f'v_mov_b32 v{vTMP}, 1'),
                I('s_mov_b64 exec, 1'),
                I(f'buffer_atomic_add v{vTMP}, off, {srd(SRD_DBG)}, s{sT0} offset:{base}'),
                I('s_mov_b64 exec, -1'),
                I(f'{label}:')]

    def poll(self, label, reg, base):
        p = self.p
        p.e(f'''v_readfirstlane_b32 s{sT0}, v{reg}
        s_lshl_b32 s{sT1}, s{sRB}, 2
        s_cmp_ge_u32 s{sT0}, 8
        s_cbranch_scc1 {label}_ok''')
        p.mark('off')
        p.e(f'''s_mov_b32 s{sT2}, 0x200000
        {label}_spin:
        s_sub_u32 s{sT2}, s{sT2}, 1
        s_cbranch_scc1 {label}_ok
        s_sleep 2
        buffer_load_dword v{reg}, off, {srd(SRD_DBG)}, s{sT1} offset:{base} sc1
        s_waitcnt vmcnt(0)
        v_readfirstlane_b32 s{sT0}, v{reg}
        s_nop 0
        s_cmp_ge_u32 s{sT0}, 8
        s_cbranch_scc0 {label}_spin''')
        p.mark('on')
        p.e(f'{label}_ok:')

    def attention(self):
        p = self.p
        self.stamp('Attn')
        for j in range(8):
            extra = {}
            if j == 5:
                extra[(7, 'sum')] = lambda: self.flag_add('L_hflag', sR, 0)
            if j == 7:
                extra[(6, 'misc')] = lambda: [I(f's_mov_b32 s{sWA}, 0x40000000'),
                                              self.VM(f'buffer_load_dword a255, off, {srd(SRD_WO)}, s{sWA}', 'warm')]
            self.step(j, extra)
        self.stamp('Aloop')
        p.e(f'''s_mul_i32 s{sH0}, s{sWI}, {4096 * GX}
        s_lshl_b32 s{sT0}, s{sG}, 19
        s_add_u32 s{sH0}, s{sH0}, s{sT0}
        s_lshr_b32 s{sT0}, s2, 3
        s_lshl_b32 s{sT0}, s{sT0}, 2
        s_add_u32 s{sT0}, s{sT0}, s{sW}
        s_mul_i32 s{sH1}, s{sT0}, 14336
        v_and_b32 v{vTMP}, {16 * GX - 1}, v{vLANE}
        v_lshlrev_b32 v{vTMP}, 7, v{vTMP}
        v_min_u32 v{vTMP + 2}, 27, v{vLANE}
        v_lshlrev_b32 v{vTMP + 2}, 7, v{vTMP + 2}
        s_mov_b32 s{sCNT}, 5
        .p2align 3
        L_loop:''')
        p.mark('loop', 6)
        for j in range(8, 16):
            extra = {}
            if j == 8:
                extra[(4, 'misc')] = lambda: [I(f's_cmp_eq_u32 s{sCNT}, 0'), I(f's_cselect_b32 s{sWA}, s{sH0}, 0x40000000')]
                extra[(5, 'misc')] = lambda: [I(f's_cmp_eq_u32 s{sCNT}, 0'), I(f's_cselect_b32 s{sWB}, s{sH1}, 0x40000000')]
            if j == 9:
                extra[(6, 'misc')] = lambda: [self.VM(f'buffer_load_dword a252, v{vTMP}, {srd(SRD_WO)}, s{sWA} offen', 'warm'),
                                              I(f's_add_u32 s{sWA}, s{sWA}, {2048 * GX}')]
            if j == 11:
                extra[(6, 'misc')] = lambda: [self.VM(f'buffer_load_dword a253, v{vTMP}, {srd(SRD_WO)}, s{sWA} offen', 'warm')]
            if j in (13, 15):
                extra[(6, 'misc')] = lambda j=j: [self.VM(f'buffer_load_dword a{254 + (j - 13) // 2}, v{vTMP + 2}, {srd(SRD_WD)}, s{sWB} offen offset:{3584 * ((j - 13) // 2)}', 'warm')]
            if j == 15:
                extra[(7, 'sum')] = lambda: [I(f's_sub_u32 s{sCNT}, s{sCNT}, 1'), I('s_cbranch_scc0 L_loop')]
            self.step(j, extra, steady=True)
        p.mark('endloop')
        self.stamp('Alast')
        sh = lambda t: (t[0], t[1] + 20) if t[0] in ('K', 'V') else ((t[0], t[1] + 40, t[2]) if t[0] in ('kf', 'vf') else t)
        self.vm = [sh(t) if isinstance(t, tuple) else t for t in self.vm[-24:]]
        self.lg = [sh(t) if isinstance(t, tuple) else t for t in self.lg[-16:]]
        hq = [(m, qb) for m in range(32, 32 + NPRE) for qb in range(4)]
        for j in range(56, 64):
            extra = {}
            if j == 56:
                extra[(4, 'misc')] = lambda: [I(f's_lshl_b32 s{sT1}, s{sRB}, 2'), I(f's_add_u32 s{sWB}, s{sH1}, {2 * 3584}')]
                extra[(5, 'misc')] = lambda: [self.VM(f'buffer_load_dword v{vTMP + 1}, off, {srd(SRD_DBG)}, s{sT1} sc1', 'hpoll')]
            if j == 57:
                extra[(6, 'misc')] = lambda: [self.VM(f'buffer_load_dword a252, v{vTMP + 2}, {srd(SRD_WD)}, s{sWB} offen', 'warm')]
            if j == 59:
                extra[(6, 'misc')] = lambda: [self.VM(f'buffer_load_dword a253, v{vTMP + 2}, {srd(SRD_WD)}, s{sWB} offen offset:3584', 'warm')]
                extra[(7, 'sum')] = lambda: self.hwarm()
            if j in (60, 61):
                for k in (4, 5, 6):
                    extra[(k, 'misc')] = lambda: self.hload(*hq.pop(0)) + self.hload(*hq.pop(0))
                for k in (1, 3):
                    extra[(k, 'sum')] = lambda: self.hload(*hq.pop(0)) + self.hload(*hq.pop(0))
            if j in (62, 63):
                for k in (1, 3):
                    extra[(k, 'sum')] = lambda: self.hload(*hq.pop(0)) + self.hload(*hq.pop(0))
            if j in (60, 62):
                extra[(5, 'sum')] = lambda j=j: self.final_loads(j - 60) + self.final_loads(j - 59)
            if j == 62:
                extra[(0, 'misc')] = lambda: self.dma45_setup(0)
                for k in range(4):
                    extra[(1 + k, 'misc')] = lambda k=k: [self.dma45(0, k)]
                extra[(5, 'misc')] = lambda: self.dma45_setup(1)
            if j == 63:
                for k in range(4):
                    extra[(k, 'misc')] = lambda k=k: [self.dma45(1, k)]
                extra[(7, 'misc')] = lambda: self.dma45_setup(2)
            self.step(j, extra)
        self.drain()

    def drain(self):
        inv = lambda qb: vNEGM + 2 * qb
        mf = [self.lsum(64, qb) for qb in range(4)]
        for e in range(8):
            mf += self.pv(64, e)
        fx = {}
        for g in range(36):
            e, k = (g - 4) >> 2, g & 3
            x = []
            if e >= 0 and k == 0 and e < 6:
                x += [self.vread(64, e + 2, 0), self.vread(64, e + 2, 1)]
            if g in (0, 1, 2, 3):
                x += [self.dma45(2, g)] + (self.dma45_setup(3) if g == 3 else [])
            if g in (5, 6, 9):
                x += [self.dma45(3, (5, 6, 9).index(g))]
            if g == 1:
                x += [I(f'v_and_b32 v201, 3, v{vLANE}')]
            if g == 2:
                x += [I('v_lshlrev_b32 v201, 13, v201')]
            if g == 5:
                x += [I(f's_lshl_b32 s{sT1}, s{sW}, 2')]
            if g == 6:
                x += [I(f's_add_u32 s{sT1}, s{sT1}, {VBASE + 8192 - 16}')]
            if g == 9:
                x += [I(f'v_add_u32 v201, s{sT1}, v201')]
            if g in (10, 13):
                q0 = 0 if g == 10 else 2
                x += [I(f'v_accvgpr_read_b32 v{inv(q) + 1}, a{aL + 4 * q}') for q in (q0, q0 + 1)]
            if g == 14:
                x += [I(f'v_add_f32 v200, v{inv(0) + 1}, v{inv(1) + 1}'), I(f'v_add_f32 v202, v{inv(2) + 1}, v{inv(3) + 1}')]
            if g == 17:
                x += [I('v_add_f32 v200, v200, v202'), I(f'v_cmp_nge_f32 vcc, {f32(2.0 ** 40)}, v200')]
            if g == 18:
                x += [I(f'v_mov_b32 v203, s{sR4}'), I('s_cmp_lg_u64 vcc, 0'), I(f's_cselect_b32 s{sT0}, 1, 0')]
            if g == 21:
                x += [I(f'v_mov_b32 v200, s{sT0}'),
                      self.LG('ds_write_b32 v201, v200', 'flagw', tag='flag',
                              lds_w=lambda w, t: [(VBASE + 8192 * n + 8192 - 16, VBASE + 8192 * n + 8192) for n in range(4)])]
            if g in (22, 25, 26, 29):
                q = (22, 25, 26, 29).index(g)
                x += [I(f'v_rcp_f32 v{inv(q)}, v{inv(q) + 1}')]
            if e >= 0 and k == 3 and e < 7:
                x += [self.wait(lg=('vf', 64, e + 1))]
            if g == 31:
                x += [I('s_barrier')]
            if g == 32:
                x += [self.LG('ds_read_b128 v[204:207], v203 offset:8176', 'flagr',
                              lds_r=lambda w, t: [(VBASE + 8192 * w + 8176, VBASE + 8192 * w + 8192)]),
                      I(f's_lshl_b32 s{sT0}, s{sW}, 12')]
            if g == 33:
                x += [I(f'v_add_u32 v202, s{sT0}, v{vL16}'), I(f'v_accvgpr_read_b32 v{vPA45}, a{aPARK}')]
            fx[g] = x
        self.p.add(fill(mf, fx))

    def hwarm(self):
        keep, self.p = self.p, Prog()
        self.poll('L_hp', vTMP + 1, 0)
        items, self.p = self.p.items, keep
        items += [I(f's_mul_i32 s{sHSO}, s{sRB}, {HROW}'), I(f's_mul_i32 s{sT0}, s{sW}, {14 * 4096}'), I(f's_add_u32 s{sHSO}, s{sHSO}, s{sT0}'),
                  I(f's_mul_i32 s{sT0}, s{sCB}, 3584'), I(f's_add_u32 s{sT0}, s{sT0}, s{sHSO}'), I(f's_add_u32 s{sT0}, s{sT0}, {NPRE * 4096}')]
        items.append(self.VM(f'buffer_load_dword a254, v{vTMP + 2}, {srd(SRD_WS)}, s{sT0} offen sc1', 'warm'))
        items += [I(f'v_and_b32 v{vTMP + 1}, 15, v{vLANE}'), I(f'v_lshrrev_b32 v{vTMP}, 4, v{vLANE}'), I(f'v_lshlrev_b32 v{vTMP}, 3, v{vTMP}'),
                  I(f'v_lshl_or_b32 v{vTMP + 1}, v{vTMP + 1}, 10, v{vTMP}'),
                  I(f's_lshl_b32 s{sXO}, s{sRB}, 16'), I(f's_lshl_b32 s{sT0}, s{sW}, 14'), I(f's_lshl_b32 s{sT1}, s{sCB}, 7'),
                  I(f's_add_u32 s{sXO}, s{sXO}, s{sT0}'), I(f's_add_u32 s{sXO}, s{sXO}, s{sT1}')]
        return items

    def dma45_setup(self, m):
        st, imm, at = pos45(m)
        m0 = I(f's_add_u32 m0, s{sR4}, {at(0) - VBASE}')
        if m < 32:
            first = [I(f's_lshl_b32 s{sSBASE}, s{sG}, 19'), I(f's_lshl_b32 s{sT0}, s{sW}, 8'), I(f's_add_u32 s{sSBASE}, s{sSBASE}, s{sT0}')] if m == 0 else []
            return first + [m0, I(f's_add_u32 s{sSO}, s{sSBASE}, {(m & 15) * 32768 + 128 * (m >> 4)}')]
        first = []
        if m == 32:
            first = [I(f's_mul_i32 s{sSO2}, s{sW}, {14 * 32768}'), I(f's_lshl_b32 s{sT0}, s{sCB}, 7'), I(f's_add_u32 s{sSO2}, s{sSO2}, s{sT0}')]
        return first + [m0, I(f's_add_u32 s{sSO}, s{sSO2}, {(m - 32) * 32768}')]

    def dma45(self, m, pc):
        at = pos45(m)[2]
        return self.VM(f'buffer_load_dwordx4 v{vD45 + pc}, {srd(SRD_WO if m < 32 else SRD_WD)}, s{sSO} offen offset:{1024 * pc} lds', ('u45', m),
                       tag=('u45', m), lds_w=lambda w, t: [(at(w) + 1024 * pc, at(w) + 1024 * pc + 1024)])

    def hload(self, m, qb):
        out = [I(f's_add_u32 s{sHSO}, s{sHSO}, 4096')] if (qb == 0 and m > 32) else []
        return out + [self.VM(f'buffer_load_dwordx4 {a_(aHF[m - 32] + 4 * qb, 4)}, v{vL16}, {srd(SRD_WS)}, s{sHSO} offen offset:{1024 * qb} sc1', ('u45', m))]

    def hload2(self, m, qb):
        d = m - (32 + NPRE + H_OEPI + H_P4B - 1)
        return [I(f's_add_u32 s{sT2}, s{sHSO}, {4096 * d}'),
                self.VM(f'buffer_load_dwordx4 {a_(aHF[m - 32] + 4 * qb, 4)}, v{vL16}, {srd(SRD_WS)}, s{sT2} offen offset:{1024 * qb} sc1', ('u45', m))]

    def aread45(self, n):
        m, t = GROUPS45[n]
        st, imm, at = pos45(m)
        r = vA4 + 4 * (n % 6)
        return [self.LG(f'ds_read_b64_tr_b16 {v(r + 2 * u, 2)}, v{vPA45S[st] + t} offset:{imm + 2048 * u}', ('a45', n),
                        lds_r=lambda w, tr: [(at(w), at(w) + 4096)]) for u in range(2)]

    def bread4(self, m, qb):
        o = qb * 16384 + (m & 15) * 1024
        return self.LG(f'ds_read_b128 {v(vB4 + 16 * (m % 3) + 4 * qb, 4)}, v{vL16} offset:{o}', ('b4', m), lds_r=lambda w, t: [(o, o + 1024)])

    def o_epilogue(self):
        p, e = self.p, self.p.e
        self.stamp('Oepi')
        inv = lambda qb: vNEGM + 2 * qb
        for t in range(1, 4):
            e(f'v_xor_b32 v{vPA45 + t}, {32 * t}, v{vPA45}')
        for t in range(4):
            e(f'v_add_u32 v{vPA45 + 4 + t}, {64 * K1}, v{vPA45 + t}')
        p.add(self.wait(lg='flagr'))
        e(f'''v_or3_b32 v204, v204, v205, v206
        v_or_b32 v204, v204, v207
        s_nop 0
        v_readfirstlane_b32 s{sT0}, v204
        s_nop 0
        s_andn2_b32 s{sT0}, s{sT0}, s{sMODE}
        s_cbranch_scc1 L_fallback''')
        p.add(self.dma45(3, 3))
        p.add(self.dma45_setup(4))
        k = 0
        hq = [(m, qb) for m in range(32 + NPRE, 32 + NPRE + H_OEPI) for qb in range(4)]
        for ks in range(4):
            for qb in range(4):
                t = vS + 16 * (k % 4)
                k += 1
                for tt in range(2):
                    if 2 * ks + tt < 5:
                        for r in range(4):
                            e(f'v_accvgpr_read_b32 v{t + 4 * tt + r}, {oreg(2 * ks + tt, qb, 1, r)}')
                for r in range(4):
                    db = 2 * ks + (r >> 1)
                    src = v(t + 2 * r, 2) if db < 5 else oreg(db, qb, 2, 2 * (r & 1))
                    e(f'v_pk_mul_f32 {v(t + 2 * r, 2)}, {src}, {v(inv(qb), 2)} op_sel_hi:[1,0]')
                for r in range(4):
                    e(f'v_cvt_pk_bf16_f32 v{t + 8 + r}, v{t + 2 * r}, v{t + 2 * r + 1}')
                o = qb * 16384 + ks * 1024
                p.add(self.LG(f'ds_write_b128 v202, {v(t + 8, 4)} offset:{o}', 'oxw', tag='ox',
                              lds_w=lambda w, tr, o=o: [(o + w * 4096, o + w * 4096 + 1024)]))
                for _ in range(1 if H_OEPI <= 4 else 2):
                    if hq:
                        p.add(self.hload(*hq.pop(0)))
        p.add(self.wait(vm=('u45', 0)))
        for t in range(4):
            p.add(self.aread45(t))
        p.add(self.wait(lg='oxw'))
        e('s_barrier')
        for m in range(2):
            for qb in range(4):
                p.add(self.bread4(m, qb))
        for pc in range(4):
            p.add(self.dma45(4, pc))
        p.add(self.dma45_setup(5))
        p.add(self.wait(vm=('u45', 1), lg=('b4', 0)))

    def unit45(self, u, mf, fx, early):
        NU = 46
        req = [(m, pc) for m in issue45(u) for pc in range(4)]
        for k in range(4):
            n = 4 * u + k
            m, t = GROUPS45[n]
            g0 = len(mf)
            A = v(vA4 + 4 * (n % 6), 4)
            for qb in range(4):
                if m < 32:
                    d = v(vACC + ((4 * (m >> 4) + t) * 4 + qb) * 4, 4)
                    B, c = v(vB4 + 16 * (m % 3) + 4 * qb, 4), ('0' if m % 16 == 0 else d)
                else:
                    d = v(self.acc5(t, qb), 4)
                    B, c = a_(aHF[m - 32] + 4 * qb, 4), ('0' if m == 32 else d)
                mf.append(I(f'v_mfma_f32_16x16x32_bf16 {d}, {A}, {B}, {c}'))
            if n + 4 < 4 * NU:
                fx[g0] = self.aread45(n + 4)
            fx[g0 + 1] = []
            for _ in range(len(issue45(u))):
                mm, pc = req.pop(0)
                fx[g0 + 1].append(self.dma45(mm, pc))
                if pc == 3 and req:
                    fx[g0 + 1] += self.dma45_setup(req[0][0]) + [I('s_nop 0')]
            if u + 2 < 32:
                fx[g0 + 1].append(self.bread4(u + 2, k))
            x = []
            if u >= 16 and (u - 16) % SPREAD == 0 and (u - 16) // SPREAD < 8 and k in (1, 2, 3):
                j = (u - 16) // SPREAD
                x += self.s_convert(j)[2 * k - 2:2 * k] if k < 3 else self.s_store(j)
            if u == 32:
                for j in (8 + 2 * k, 9 + 2 * k):
                    x += self.s_convert(j) + self.s_store(j)
            if 20 <= u < 20 + 2 * H_P4B and k in (0, 2):
                j = 2 * (u - 20) + (k >> 1)
                x += self.hload(32 + NPRE + H_OEPI + j // 4, j % 4)
            if u in (33, 34):
                for mm in range(32 + NPRE + H_OEPI + H_P4B + u - 33, 46, 2):
                    x += self.hload2(mm, k)
            if u == SAMPLE_AT and k == 0:
                x += self.spoll_issue()
            if early and u == CHECK_AT:
                x += self.sp_load(2 * k) + self.sp_load(2 * k + 1)
            if early and u in (CHECK_AT + 1, CHECK_AT + 2):
                x += self.sp_load(8 + 4 * (u - CHECK_AT - 1) + k)
            if not early and u == 44 and k == 0:
                x += [self.VM(f'buffer_load_dword v15, v14, {srd(SRD_WS)}, s{sKB} offen sc1', 'spoll')]
            if u == 39 and k < 3:
                x += self.selectors()[4 * k:4 * k + 4]
            if u == 38 and k == 0:
                x += [I(f's_lshl_b32 s{sT0}, s{sW}, 12'), I(f'v_add_u32 v17, s{sT0}, v{vL16}')]
            if u == 38 and k == 1:
                x += [I('v_mov_b32 v16, 0x3f80')]
            done = [(tt, qb) for tt in range(4) for qb in range(4) if 4 * (46 - NTM) + NTM * (tt + 1) < n and (tt, qb) not in self.redone]
            for tt, qb in done[:2 if NTM < 4 else 1]:
                self.redone.add((tt, qb))
                x += self.red_write(tt, qb)
            if k == 3 and issue45(u + 1):
                x += self.dma45_setup(issue45(u + 1)[0])
            fx[g0 + 2] = x
            if k == 1:
                fx[g0 + 3] = [self.wait(lg=('a45', n + 2))]
            if k == 3 and u + 1 < NU:
                tag = ('u45', u + 2 if u < 44 - NTM else 45)
                fx[g0 + 3] = [self.wait(vm=tag if u <= 44 - NTM else None, lg=('a45', n + 2))]
                if u == 35:
                    fx[g0 + 3].append(I('s_barrier'))
                for hf in range(2):
                    cnt = self.vm.count(('sst', hf))
                    late = hf == 1 and u == FLAG1_AT
                    if cnt == 8 and hf not in self.flagged and (late or self.after(self.vm, ('sst', hf)) > self.after(self.vm, tag)):
                        self.flagged.add(hf)
                        fx[g0 + 3] += [self.wait(vm=('sst', hf))] if late else []
                        fx[g0 + 3] += self.stamp_items('flag%d' % hf) + [I(f'v_mov_b32 v{vTMP}, 1'),
                                       self.VM(f'buffer_store_dword v{vTMP}, off, {srd(SRD_WS)}, s{sFLAG} offset:{128 * hf} sc1', 'flag')]

    def gemm45(self):
        p = self.p
        self.stamp('P4')
        self.flagged = set()
        self.redone = set()
        mf, fx = [], {}
        for m in range(32):
            if m in (4, 8, 12, 16, 20, 24, 28):
                p.add(fill(mf, fx))
                mf, fx = [], {}
                self.stamp('P4b' if m == 16 else 'P4_%d' % m)
            self.unit45(m, mf, fx, False)
        p.add(fill(mf, fx))
        mf, fx = [], {}
        self.stamp('P5_32')
        for m in range(32, CHECK_AT):
            if m == 37:
                p.add(fill(mf, fx))
                mf, fx = [], {}
                self.stamp('P5_37')
            self.unit45(m, mf, fx, False)
        p.add(fill(mf, fx))
        p.add(self.wait(vm='spoll'))
        self.stamp('poll')
        p.e('v_cmp_ne_u32 vcc, 1, v15\ns_cbranch_vccnz L_late')
        state = (list(self.vm), list(self.lg), set(self.flagged), self.nstamp, list(self.names))
        for early in (True, False):
            self.vm, self.lg, self.flagged, self.nstamp, self.names = list(state[0]), list(state[1]), set(state[2]), state[3], list(state[4])
            if not early:
                p.e('L_late:')
            skip = early != self.trace_even
            if skip:
                p.mark('off')
            mf, fx = [], {}
            self.redone = set()
            for m in range(CHECK_AT, 46):
                self.unit45(m, mf, fx, early)
            assert self.flagged == {0, 1}
            p.add(fill(mf, fx))
            self.final(early)
            if self.prof:
                self.profile_out()
            p.e('s_endpgm')
            if skip:
                p.mark('on')

    def spoll_issue(self):
        return [I(f's_lshl_b32 s{sT3}, s{sRB}, 3'), I(f's_add_u32 s{sT3}, s{sT3}, s{sCB}'), I(f's_lshl_b32 s{sKB}, s{sT3}, 7'),
                I(f's_add_u32 s{sKB}, s{sKB}, {FOFF}'), I(f'v_and_b32 v14, 7, v{vLANE}'), I('v_lshlrev_b32 v14, 2, v14'),
                I(f's_lshl_b32 s{sH0}, s{sT3}, 16'), I(f's_lshl_b32 s{sT3}, s{sW}, 11'), I(f's_add_u32 s{sH0}, s{sH0}, s{sT3}'),
                I(f's_add_u32 s{sH0}, s{sH0}, {SOFF}'),
                self.VM(f'buffer_load_dword v15, v14, {srd(SRD_WS)}, s{sKB} offen sc1', 'spoll')]

    def spoll_spin(self):
        self.p.e(f'''s_mov_b32 s{sT2}, 0x200000
        L_sp_spin:
        s_waitcnt vmcnt(0)
        v_cmp_ne_u32 vcc, 1, v15
        s_cbranch_vccz L_sp_ok''')
        self.p.mark('off2')
        self.p.e(f'''buffer_load_dword v15, v14, {srd(SRD_WS)}, s{sKB} offen sc1
        s_sub_u32 s{sT2}, s{sT2}, 1
        s_cbranch_scc0 L_sp_spin
        s_waitcnt vmcnt(0)''')
        self.p.mark('on2')
        self.p.e('L_sp_ok:')

    def sp_load(self, k):
        g, half = k >> 1, k & 1
        r = vSP(k)
        out = [I(f's_add_u32 s{sH0}, s{sH0}, 8192')] if (half == 0 and g) else []
        return out + [self.VM(f'buffer_load_dwordx4 {v(r, 4)}, v{vL16}, {srd(SRD_WS)}, s{sH0} offen offset:{1024 * half} sc1', ('sp', g))]

    def acc5(self, t, qb):
        return 32 + (t * 4 + qb) * 4

    def s_convert(self, k):
        cbh, qb, half = k >> 3, (k >> 1) & 3, k & 1
        x = vACC + ((4 * cbh + 2 * half) * 4 + qb) * 4
        y = x + 16
        t = 120 + 4 * (k & 1)
        return [I(f'v_cvt_pk_bf16_f32 v{t}, v{x}, v{x + 1}'), I(f'v_cvt_pk_bf16_f32 v{t + 1}, v{x + 2}, v{x + 3}'),
                I(f'v_cvt_pk_bf16_f32 v{t + 2}, v{y}, v{y + 1}'), I(f'v_cvt_pk_bf16_f32 v{t + 3}, v{y + 2}, v{y + 3}')]

    def s_store(self, k):
        cbh, qb, half = k >> 3, (k >> 1) & 3, k & 1
        out = []
        if k == 0:
            out += [I(f's_lshl_b32 s{sH1}, s{sR}, 19'), I(f's_lshl_b32 s{sT0}, s{sW}, 17'), I(f's_lshl_b32 s{sT1}, s{sG}, 13'),
                    I(f's_add_u32 s{sH1}, s{sH1}, s{sT0}'), I(f's_add_u32 s{sH1}, s{sH1}, s{sT1}'), I(f's_add_u32 s{sH1}, s{sH1}, {SOFF}')]
        elif k % 4 == 0:
            out += [I(f's_add_u32 s{sH1}, s{sH1}, {4096 if k % 8 else 65536 - 4096}')]
        out.append(self.VM(f'buffer_store_dwordx4 {v(120 + 4 * (k & 1), 4)}, v{vL16}, {srd(SRD_WS)}, s{sH1} offen offset:{(qb & 1) * 2048 + half * 1024} sc1', ('sst', cbh)))
        return out

    def final_loads(self, t):
        dst = v(24 + 2 * t, 2) if t < 2 else a_(244 + 2 * (t - 2), 2)
        return [self.VM(f'buffer_load_dwordx2 {dst}, v{vTMP + 1}, {srd(SRD_X)}, s{sXO} offen offset:{32 * t}', 'xres')]

    def selectors(self):
        return [I(f'v_bfe_u32 v120, v{vLANE}, 2, 2'), I(f'v_lshrrev_b32 v121, 4, v{vLANE}'), I(f'v_and_b32 v124, 1, v{vLANE}'),
                I('v_cmp_eq_u32 vcc, v120, v121'),
                I('v_lshlrev_b32 v124, 4, v124'), I(f'v_and_b32 v125, 2, v{vLANE}'), I('v_lshlrev_b32 v124, v124, v16'),
                I('v_cndmask_b32 v124, 0, v124, vcc'),
                I('v_cmp_eq_u32 vcc, 0, v125'), I('v_mov_b32 v120, 0'), I('v_mov_b32 v121, 0'), I('v_cndmask_b32 v122, 0, v124, vcc')]

    def red_write(self, t, qb):
        o = qb * 16384 + t * 1024
        return [self.LG(f'ds_write_b128 v17, {v(self.acc5(t, qb), 4)} offset:{o}', 'redw', tag='red',
                        lds_w=lambda w, tr: [(o + w * 4096, o + w * 4096 + 1024)])]

    def final(self, early):
        p, e = self.p, self.p.e
        self.stamp('P6')
        S, X, F, T = 192, 208, 32, 48
        lo, hi = v(122, 4), v(120, 4)
        e(f'''v_sub_u32 v123, v124, v122
        v_mov_b32 v124, 0
        v_mov_b32 v125, 0
        s_lshl_b32 s{sT0}, s{sW}, 14
        v_add_u32 v18, s{sT0}, v{vL16}''')
        mx, ms = [], []
        for half in range(2):
            for tt in range(2):
                mx.append(I(f'v_mfma_f32_16x16x32_bf16 {v(X + 8 * half + 4 * tt, 4)}, {hi if tt else lo}, {a_(244, 4) if half else v(24, 4)}, 0'))
        for g in range(8):
            for half in range(2):
                for tt in range(2):
                    d = v(S + 8 * half + 4 * tt, 4)
                    ms.append(I(f'v_mfma_f32_16x16x32_bf16 {d}, {hi if tt else lo}, {v(vSP(2 * g + half), 4)}, {d if g else 0}'))
        rest = [(tt, qb) for tt in range(4) for qb in range(4) if (tt, qb) not in self.redone]

        def reads():
            out = []
            for src in range(4):
                for t in range(4):
                    o = src * 4096 + t * 1024
                    out.append(self.LG(f'ds_read_b128 {v(32 + (src * 4 + t) * 4, 4)}, v18 offset:{o}', ('redr', src),
                                       lds_r=lambda w, tr, o=o: [(o + w * 16384, o + w * 16384 + 1024)]))
            return out

        def silu():
            e('s_waitcnt lgkmcnt(0)')
            for n in range(8):
                e(f'v_pk_add_f32 {v(32 + 2 * n, 2)}, {v(32 + 2 * n, 2)}, {v(48 + 2 * n, 2)}')
            for n in range(8):
                e(f'v_pk_add_f32 {v(64 + 2 * n, 2)}, {v(64 + 2 * n, 2)}, {v(80 + 2 * n, 2)}')
            e(f'v_mov_b32 v96, {f32(-math.log2(math.e))}')
            for n in range(8):
                e(f'v_pk_add_f32 {v(F + 2 * n, 2)}, {v(32 + 2 * n, 2)}, {v(64 + 2 * n, 2)}')
            for n in range(8):
                e(f'v_pk_mul_f32 {v(T + 2 * n, 2)}, {v(F + 2 * n, 2)}, {v(96, 2)} op_sel_hi:[1,0]')
            for n in range(16):
                e(f'v_exp_f32 v{T + n}, v{T + n}')
            e('s_nop 0')
            for n in range(8):
                e(f'v_pk_add_f32 {v(T + 2 * n, 2)}, {v(T + 2 * n, 2)}, 1.0 op_sel_hi:[1,0]')
            for n in range(16):
                e(f'v_rcp_f32 v{T + n}, v{T + n}')
            e('s_nop 0')
            for n in range(8):
                e(f'v_pk_mul_f32 {v(F + 2 * n, 2)}, {v(F + 2 * n, 2)}, {v(T + 2 * n, 2)}')

        if early:
            fx = {g: self.red_write(*x) for g, x in enumerate(rest)}
            for g in range(8):
                fx[3 + 4 * g] = fx.get(3 + 4 * g, []) + [self.wait(vm=('sp', g))]
            fx[16] = [I('s_waitcnt lgkmcnt(0)'), I('s_barrier')]
            rd = reads()
            for k, g in enumerate((17, 18, 20, 21, 22, 24, 25, 26)):
                fx[g] = rd[2 * k:2 * k + 2]
            p.add(fill(mx + ms, fx))
            self.stamp('ssum')
            silu()
        else:
            p.add(fill(mx, {g: self.red_write(*x) for g, x in enumerate(rest[:4])}))
            for x in rest[4:]:
                p.add(self.red_write(*x))
            e('s_waitcnt lgkmcnt(0)\ns_barrier')
            p.add(reads())
            silu()
            self.spoll_spin()
            self.stamp('ssum')
            for k in range(16):
                p.add(self.sp_load(k))
            for g in range(8):
                p.add(self.wait(vm=('sp', g)))
                p.add(ms[4 * g:4 * g + 4])
            e('s_nop 4')
        for t in range(4):
            for n in (2 * t, 2 * t + 1):
                e(f'v_pk_fma_f32 {v(S + 2 * n, 2)}, {v(S + 2 * n, 2)}, {v(F + 2 * n, 2)}, {v(X + 2 * n, 2)}')
            for n in (2 * t, 2 * t + 1):
                e(f'v_cvt_pk_bf16_f32 v{96 + n}, v{S + 2 * n}, v{S + 2 * n + 1}')
            p.add(self.VM(f'buffer_store_dwordx2 {v(96 + 2 * t, 2)}, v{vTMP + 1}, {srd(SRD_OUT)}, s{sXO} offen offset:{32 * t}', 'out'))

    def fallback(self):
        p, e = self.p, self.p.e
        p.mark('off')
        e(f'''L_fallback:
        s_mov_b32 s{sMODE}, 1
        s_waitcnt vmcnt(0) lgkmcnt(0)
        s_barrier
        v_and_b32 v10, 15, v{vLANE}
        v_lshrrev_b32 v11, 4, v{vLANE}
        v_lshlrev_b32 v11, 4, v11
        v_lshl_or_b32 v10, v10, 8, v11
        s_mov_b32 s{sSO}, 0''')
        for q in range(4):
            e(f'v_mov_b32 v{vMINIT + q}, 0xff800000')
        e('L_maxloop:')
        for ks in range(4):
            e(f'buffer_load_dwordx4 {v(160 + 4 * ks, 4)}, v10, {srd(SRD_K)}, s{sSO} offen offset:{64 * ks}')
        e('s_waitcnt vmcnt(0)')
        for ks in range(4):
            for qb in range(4):
                d = v(vS + 4 * qb, 4)
                e(f'v_mfma_f32_16x16x32_bf16 {d}, {v(160 + 4 * ks, 4)}, {v(vQ + (ks * 4 + qb) * 4, 4)}, {d if ks else 0}')
        e(f's_add_u32 s{sSO}, s{sSO}, 4096\ns_nop 7')
        for qb in range(4):
            s = vS + 4 * qb
            e(f'v_max3_f32 v{vMINIT + qb}, v{s}, v{s + 1}, v{vMINIT + qb}\nv_max3_f32 v{vMINIT + qb}, v{s + 2}, v{s + 3}, v{vMINIT + qb}')
        e(f'''s_cmp_lt_u32 s{sSO}, 0x80000
        s_cbranch_scc1 L_maxloop
        v_accvgpr_read_b32 v{vKA}, a{aPARK + 2}
        v_accvgpr_read_b32 v{vVA}, a{aPARK + 1}
        s_lshl_b32 s{sKB}, s{sW}, 12
        s_add_u32 s{sKA}, s{sKB}, {(2048 - 32) * 256}
        s_and_b32 s{sKA}, s{sKA}, 0x7ffff
        s_add_u32 s{sKB}, s{sKB}, {32 * 256}''')
        for t in range(1, 4):
            e(f'v_xor_b32 v{vKA + t}, {64 * t}, v{vKA}')
        for t in range(1, 8):
            e(f'v_xor_b32 v{vVA + t}, {32 * t}, v{vVA}')
        save = list(self.vm)
        for base, fn, c, so in ((3 * 16384, self.kdma, -1, sKA), (0, self.kdma, 0, sKB), (VBASE + 3 * 16384, self.vdma, 0, sKA),
                                (VBASE, self.vdma, 1, sKB), (16384, self.kdma, 1, sKA)):
            if (fn, c) == (self.kdma, 1):
                e(f's_add_u32 s{sKA}, s{sKB}, 16384')
            e(f's_add_u32 m0, s{sM0K}, {base}\ns_nop 0')
            for pc in range(4):
                p.add(fn(c, pc, so))
        self.vm = save
        e('s_waitcnt vmcnt(0)\ns_branch L_attn')
        p.mark('on')

    def profile_out(self):
        e = self.p.e
        self.stamp('End')
        e(f'''s_memrealtime s[72:73]
        s_lshl_b32 s{sT0}, s2, 2
        s_add_u32 s{sT0}, s{sT0}, s{sW}
        s_lshl_b32 s{sT0}, s{sT0}, 7
        s_add_u32 s{sT0}, s{sT0}, {28 << 20}
        s_waitcnt lgkmcnt(0)
        s_mov_b64 exec, 1''')
        for k, r in list(enumerate([100, 72] + [STAMP0 + k for k in range(self.nstamp)])) + [(30, 24), (31, 25)]:
            e(f'v_mov_b32 v2, s{r}\nbuffer_store_dword v2, off, {srd(SRD_WS)}, s{sT0} offset:{4 * k}')

    def build(self):
        self.setup()
        self.stamp('LN')
        self.layernorm()
        self.gemm12()
        self.attn_prologue()
        self.attention()
        self.o_epilogue()
        self.gemm45()
        self.fallback()
        self.p.e('L_end:')
        return self.p


HEADER = open(__file__.rsplit('/', 1)[0] + '/header.txt' if '/' in __file__ else 'header.txt').read()


def render(prog):
    k = NAME + '_kernel'
    return HEADER + f'''; @launch grid=(256,1,1) block=(256,1,1) lds=163840
.amdgcn_target "amdgcn-amd-amdhsa--gfx950"
.text
.globl {k}
.p2align 8
.type {k},@function
{k}:
''' + prog.text() + f''' s_endpgm
.section .rodata,"a"
.p2align 6
.amdhsa_kernel {k}
  .amdhsa_next_free_vgpr 512
  .amdhsa_next_free_sgpr 102
  .amdhsa_accum_offset 256
  .amdhsa_group_segment_fixed_size 0
  .amdhsa_kernarg_size 96
  .amdhsa_user_sgpr_count 2
  .amdhsa_user_sgpr_kernarg_segment_ptr 1
  .amdhsa_system_sgpr_workgroup_id_x 1
.end_amdhsa_kernel
'''


if __name__ == '__main__':
    prof = '--prof' in sys.argv
    if '--only' in sys.argv:
        ONLY = sys.argv[sys.argv.index('--only') + 1].split(',') + ['End']
        sys.argv.remove(sys.argv[sys.argv.index('--only') + 1])
    if '--ln' in sys.argv:
        LNSTART, LNEVERY = map(int, sys.argv[sys.argv.index('--ln') + 1].split(','))
        sys.argv.remove(sys.argv[sys.argv.index('--ln') + 1])
    if '--abl' in sys.argv:
        ABL = set(sys.argv[sys.argv.index('--abl') + 1].split(','))
        sys.argv.remove(sys.argv[sys.argv.index('--abl') + 1])
    RT = '--rt' in sys.argv
    if '--spread' in sys.argv:
        SPREAD = int(sys.argv[sys.argv.index('--spread') + 1])
        sys.argv.remove(sys.argv[sys.argv.index('--spread') + 1])
    for kv in [x[2:] for x in sys.argv if x.startswith('-D')]:
        globals()[kv.split('=')[0]] = int(kv.split('=')[1])
    GROUPS45 = [(m, t) for m in range(46 - NTM) for t in range(4)] + [(m, t) for t in range(4) for m in range(46 - NTM, 46)]
    if '--g1' in sys.argv:
        GX = 1
    out = [a for a in sys.argv[1:] if not a.startswith('-')][0]
    other = Gen(prof=prof, trace_even=True).build()
    errs = check(other.trace())
    g = Gen(prof=prof)
    prog = g.build()
    assert other.text() == prog.text()
    tr = prog.trace()
    errs += check(tr)
    for x in errs[:0 if ABL else 40]:
        print('ERR', x)
    print(len(errs), 'checker findings')
    marks = cycles(tr)
    prev = ('start', 0)
    for m in marks:
        print('%-6s %7d' % (prev[0], m[1] - prev[1]))
        prev = m
    print('total issue-model cycles', marks[-1][1])
    open(out, 'w').write(render(prog) + ('; stamps' + ('(rt)' if RT else '') + ': ' + ' '.join(g.names) + '\n' if prof else ''))
```

```python
import math, struct, sys
from asmlib import I, Prog, fill, check, cycles

NAME = 'recurrent_scan__gqa_block_cached__glu_gated_glu__prompt'
K1 = 1024
LNSTART, LNEVERY = 100, 11
FLAG1_AT = 36
SAMPLE_AT = 37
CHECK_AT = 41
ABL = set()
RT = False
SPREAD = 1
DBGOUT = 0
ONLY = None
GX = 2


def f32(x):
    return '0x%08x' % struct.unpack('<I', struct.pack('<f', x))[0]


C_SCALE = math.log2(math.e) / math.sqrt(128.0)
SQRT128 = math.sqrt(128.0)

SRD_X, SRD_K, SRD_V, SRD_WQ, SRD_WO, SRD_WG, SRD_WU, SRD_WD, SRD_OUT, SRD_WS, SRD_DBG, SRD_CODE = [28 + 4 * i for i in range(12)]
sW, sG, sR, sRB, sCB, sMODE, sCNT = 76, 77, 78, 79, 80, 81, 82
sRING, sSO, sKA, sKB, sM0K, sT0, sT1, sT2, sT3 = 83, 84, 85, 86, 87, 88, 89, 90, 91
sH0, sH1, sHSO, sSBASE, sR4, sC1, sC2, sSO2 = 92, 93, 94, 95, 96, 97, 98, 99
sWI = 72
sRL, sFLAG = 3, 74
STAMP0 = 4


def srd(b):
    return 's[%d:%d]' % (b, b + 3)


def v(a, n=1):
    return 'v%d' % a if n == 1 else 'v[%d:%d]' % (a, a + n - 1)


def a_(a, n=1):
    return 'a%d' % a if n == 1 else 'a[%d:%d]' % (a, a + n - 1)


vLANE = 1
vPA12 = 2
vD1 = 6
vD2 = 10
vXB = 14
vKD = 16
vUT = 20
vMINIT = 24
vD45 = 28
vVA = 2
vKA = 10
vVD = 14
vL16 = 20
vTMP = 21
vH = 32
vP = 32
vGATE = 64
vQ = 64
vACC = 128
vS = 128
vNEGM = 192
vPA45 = 2
aUP = 0
aB = 192
aA = 224
aO, aL, aONE, aKF, aVF = 0, 128, 144, 148, 164
aPARK = 248
aHF = [80, 96, 112, 180, 196, 212, 228, 128, 148, 164, 0, 16, 32, 48]
NPRE = 7
vPA45S = [2, 6]
NTM = 3
GROUPS45 = [(m, t) for m in range(46 - NTM) for t in range(4)] + [(m, t) for t in range(4) for m in range(46 - NTM, 46)]
H_OEPI, H_P4B = 3, 2
vA4 = 96
sXO = 73
sWA, sWB = 75, 73


def oreg(db, qb, n=4, r=0):
    return a_((db * 4 + qb) * 4 + r, n) if db < 5 else v(208 + ((db - 5) * 4 + qb) * 4 + r, n)


vB4 = 32


def vSP(k):
    return 128 + 4 * k


XS = 96 * K1
VBASE = 64 * K1
HOFF, SOFF, FOFF = 0, 8 << 20, 24 << 20
HROW = 56 * 4096


def ring12(w):
    return (w & 1) * 8 * K1 + (48 * K1 if w < 2 else 0)


SLOT12 = {0: 16 * K1, 1: 32 * K1, 2: 0}


def pos12(m):
    return SLOT12[(m // 2) % 3] + 4096 * (m & 1)


def pos45(m):
    p = m % 6
    if p < 2:
        return 1, 4096 * p, lambda w: VBASE + 8192 * w + 64 * K1 + 4096 * p
    o = (0 if p < 4 else 32 * K1) + 4096 * (p & 1)
    return 0, o, lambda w: VBASE + 8192 * w + o


def issue45(m):
    return [m + 5] if m + 5 < 46 else []


def sprinkle(body, mem, start, every):
    out, k = [], 0
    for n, ins in enumerate(body):
        out.append(ins)
        if k < len(mem) and n >= start and (n - start) % every == 0:
            out += mem[k]()
            k += 1
    while k < len(mem):
        out += mem[k]()
        k += 1
    return out


class Gen:
    def __init__(self, prof=False, dump=None, trace_even=False):
        self.trace_even = trace_even
        self.p = Prog()
        self.prof, self.dump = prof, dump
        self.vm = []
        self.vm_alt = None
        self.lg = []
        self.nstamp = 0
        self.only = ONLY
        self.names = []

    def VM(self, text, key, **kw):
        self.vm.append(key)
        if self.vm_alt is not None:
            self.vm_alt.append(key)
        return I(text, **kw)

    def LG(self, text, key, **kw):
        self.lg.append(key)
        return I(text, **kw)

    def after(self, log, tag):
        idx = max(i for i, t in enumerate(log) if t == tag)
        return len(log) - 1 - idx

    def wait(self, vm=None, lg=None):
        s = 's_waitcnt'
        if vm is not None:
            s += ' vmcnt(%d)' % min([self.after(log, vm) for log in (self.vm, self.vm_alt) if log is not None] + [63])
        if lg is not None:
            s += ' lgkmcnt(%d)' % min(self.after(self.lg, lg), 15)
        return I(s)

    def stamp_items(self, name):
        keep, self.p = self.p, Prog()
        self.stamp(name)
        items, self.p = self.p.items, keep
        return items

    def stamp(self, name):
        self.p.mark('phase', name)
        if self.prof and (self.only is None or name in self.only):
            s = STAMP0 + self.nstamp
            self.nstamp += 1
            self.names.append(name)
            assert s < 26
            self.p.e('s_waitcnt lgkmcnt(0)\n%s s[26:27]\ns_waitcnt lgkmcnt(0)\ns_mov_b32 s%d, s26' % ('s_memrealtime' if RT else 's_memtime', s))
            if name in ('Aloop', 'Alast') and self.only is not None and len(self.only) < 18:
                self.p.e('s_memrealtime s[26:27]\ns_waitcnt lgkmcnt(0)\ns_mov_b32 s%d, s26' % (24 if name == 'Aloop' else 25))

    def setup(self):
        e = self.p.e
        e('s_cmp_ge_u32 s2, 256\ns_cbranch_scc1 L_end')
        for reg, off in ((SRD_X, 0), (SRD_WG, 48), (SRD_WU, 56), (SRD_WQ, 24), (SRD_K, 8), (SRD_V, 16), (SRD_WO, 32),
                         (SRD_WD, 64), (SRD_OUT, 72), (SRD_DBG, 80), (SRD_WS, 88)):
            e('s_load_dwordx2 s[%d:%d], s[0:1], %d' % (reg, reg + 1, off))
        if self.prof:
            e(('s_memrealtime' if RT else 's_memtime') + ' s[4:5]\ns_memrealtime s[100:101]')
            self.nstamp = 1
            self.names.append('start')
        e(f'''s_getpc_b64 s[{SRD_CODE}:{SRD_CODE + 1}]
        L_pc:
        s_mov_b32 s{SRD_CODE + 2}, L_end-L_pc
        s_mov_b32 s{SRD_CODE + 3}, 0x20000
        v_and_b32 v51, 7, v0
        v_lshrrev_b32 v128, 6, v0
        v_lshlrev_b32 v51, 7, v51
        s_lshr_b32 s{sT1}, s2, 3
        v_lshl_or_b32 v51, v128, 10, v51
        s_lshl_b32 s{sT1}, s{sT1}, 12''')
        self.p.add(self.VM(f'buffer_load_dword a252, v51, {srd(SRD_CODE)}, s{sT1} offen', 'warm'))
        e(f'''v_and_b32 v{vLANE}, 63, v0
        s_and_b32 s{sG}, s2, {8 // GX - 1}
        v_readfirstlane_b32 s{sW}, v128''')
        if GX == 2:
            e(f'''s_lshl_b32 s{sG}, s{sG}, 1
            s_bfe_u32 s{sT0}, s2, 0x10003
            s_add_u32 s{sG}, s{sG}, s{sT0}
            s_lshr_b32 s{sRL}, s2, 4
            s_bfe_u32 s{sT0}, s2, 0x10002
            s_lshl_b32 s{sT0}, s{sT0}, 4
            s_add_u32 s{sR}, s{sRL}, s{sT0}''')
        else:
            e(f's_lshr_b32 s{sR}, s2, 3\ns_lshr_b32 s{sRL}, s2, 3')
        for reg, size in ((SRD_X, 2 << 20), (SRD_WG, 512 * 3584), (SRD_WU, 512 * 3584), (SRD_WQ, 4 << 20), (SRD_WO, 4 << 20),
                          (SRD_WD, 1792 * 1024), (SRD_OUT, 2 << 20), (SRD_DBG, 256), (SRD_WS, 32 << 20)):
            e('s_mov_b32 s%d, 0x%x\ns_mov_b32 s%d, 0x20000' % (reg + 2, size, reg + 3))
        e(f'''v_and_b32 v129, 15, v{vLANE}
        v_lshrrev_b32 v130, 4, v{vLANE}
        v_lshlrev_b32 v131, 4, v129
        v_lshl_or_b32 v131, v130, 10, v131
        s_lshl_b32 s{sT0}, s{sR}, 16
        s_lshl_b32 s{sT1}, s{sW}, 14
        s_add_u32 s{sT0}, s{sT0}, s{sT1}
        s_mov_b32 s{sKA}, s{sT0}''')
        e(f'''v_lshrrev_b32 v132, 3, v{vLANE}
        v_bfe_u32 v133, v{vLANE}, 1, 2
        v_and_b32 v134, 1, v130
        v_xor_b32 v134, v133, v134
        v_and_b32 v135, 1, v{vLANE}
        v_lshlrev_b32 v135, 4, v135
        v_lshl_or_b32 v136, v134, 5, v135
        s_mul_i32 s{sT0}, s{sG}, 448
        s_and_b32 s{sT1}, s{sG}, 1
        s_lshl_b32 s{sT2}, s{sT1}, 6
        s_sub_u32 s{sT0}, s{sT0}, s{sT2}
        s_lshl_b32 s{sT2}, s{sW}, 7
        s_add_u32 s{sT2}, s{sT0}, s{sT2}
        v_mul_u32_u24 v137, 3584, v132
        v_add3_u32 v{vD1}, v137, v136, s{sT2}
        v_xor_b32 v138, 64, v136
        v_add3_u32 v{vD1 + 1}, v137, v138, s{sT2}
        v_add_u32 v{vD1 + 1}, {8 * 3584 - 1024}, v{vD1 + 1}
        v_add_u32 v{vD1 + 2}, {16 * 3584 - 2048}, v{vD1}
        v_add_u32 v{vD1 + 3}, {16 * 3584 - 2048}, v{vD1 + 1}
        s_and_b32 s{sRING}, s{sW}, 1
        s_lshl_b32 s{sRING}, s{sRING}, 13
        s_cmp_lt_u32 s{sW}, 2
        s_cselect_b32 s{sT3}, {48 * K1}, 0
        s_add_u32 s{sRING}, s{sRING}, s{sT3}''')
        e(f'''s_lshl_b32 s{sKB}, s{sRL}, 2
        s_add_u32 s{sKB}, s{sKB}, s{sW}
        s_mul_i32 s{sT1}, s{sKB}, {GX}
        v_lshrrev_b32 v139, 2, v{vLANE}
        v_min_u32 v140, {GX - 1}, v139
        v_add_u32 v140, s{sT1}, v140
        v_and_b32 v141, 3, v{vLANE}
        v_lshlrev_b32 v141, 7, v141
        v_mul_u32_u24 v140, 3584, v140
        v_add3_u32 v50, v140, v141, s{sT0}
        v_and_b32 v142, 7, v{vLANE}
        v_lshlrev_b32 v142, 7, v142
        s_lshl_b32 s{sT1}, s{sKB}, 13
        s_lshl_b32 s{sT2}, s{sG}, 10
        s_add_u32 s{sT1}, s{sT1}, s{sT2}
        v_add_u32 v52, s{sT1}, v142''')
        e(f'''s_mov_b32 s{SRD_K + 3}, 0x20000
        s_mov_b32 s{SRD_V + 3}, 0x20000
        s_mov_b32 s{sMODE}, 0
        s_and_b32 s{sRB}, s2, 7
        s_xor_b32 s{sRB}, s{sRB}, 4
        s_lshl_b32 s{sRB}, s{sRB}, 2
        s_lshr_b32 s{sT0}, s2, 6
        s_add_u32 s{sRB}, s{sRB}, s{sT0}
        s_bfe_u32 s{sCB}, s2, 0x30003
        s_lshl_b32 s{sM0K}, s{sW}, 12
        s_lshl_b32 s{sR4}, s{sW}, 13
        s_add_u32 s{sR4}, s{sR4}, {VBASE}''')
        e(f'''s_lshl_b32 s{sT0}, s{sG}, 2
        s_add_u32 s{sT0}, s{sT0}, s{sW}
        s_lshl_b32 s{sT0}, s{sT0}, 8
        v_lshlrev_b32 v137, 13, v132
        v_add3_u32 v{vD2}, v137, v136, s{sT0}
        v_add3_u32 v{vD2 + 1}, v137, v138, s{sT0}
        v_add_u32 v{vD2 + 1}, {8 * 8192 - 1024}, v{vD2 + 1}
        v_add_u32 v{vD2 + 2}, {16 * 8192 - 2048}, v{vD2}
        v_add_u32 v{vD2 + 3}, {16 * 8192 - 2048}, v{vD2 + 1}''')
        e(f'''v_xor_b32 v134, v133, v130
        v_lshl_or_b32 v134, v134, 5, v135
        v_lshl_or_b32 v{vD45}, v132, 10, v134
        v_add_u32 v{vD45 + 1}, 7168, v{vD45}
        v_add_u32 v{vD45 + 2}, {2 * 7168}, v{vD45}
        v_add_u32 v{vD45 + 3}, {3 * 7168}, v{vD45}''')
        e(f'''v_lshrrev_b32 v146, 2, v129
        v_and_b32 v147, 3, v129
        v_lshlrev_b32 v147, 3, v147
        v_and_b32 v148, 1, v130
        v_lshrrev_b32 v149, 3, v129
        v_lshl_or_b32 v149, v148, 1, v149
        v_lshl_or_b32 v150, v148, 2, v146
        v_lshl_or_b32 v149, v149, 5, v147
        v_lshl_or_b32 v150, v150, 5, v147
        v_lshl_add_u32 v151, v130, 3, v146
        v_lshl_add_u32 v152, v130, 2, v146
        v_lshl_or_b32 v153, v151, 7, v149
        v_add_u32 v{vPA12}, s{sRING}, v153
        v_lshl_or_b32 v153, v152, 7, v149
        v_add_u32 v153, s{sR4}, v153
        v_lshl_or_b32 v154, v152, 8, v150
        v_add_u32 v154, {VBASE}, v154
        v_accvgpr_write_b32 a{aPARK}, v153
        v_accvgpr_write_b32 a{aPARK + 1}, v154''')
        for t in range(1, 4):
            e(f'v_xor_b32 v{vPA12 + t}, {32 * t}, v{vPA12}')
        e(f'''v_xor_b32 v155, v129, v130
        v_lshlrev_b32 v155, 4, v155
        v_lshl_or_b32 v156, v129, 8, v155
        v_accvgpr_write_b32 a{aPARK + 2}, v156
        v_lshl_or_b32 v{vKD}, v130, 8, v155
        v_xor_b32 v{vKD + 1}, 64, v{vKD}
        v_xor_b32 v{vKD + 2}, 128, v{vKD}
        v_xor_b32 v{vKD + 3}, 192, v{vKD}
        v_lshrrev_b32 v156, 1, v129
        v_xor_b32 v156, v156, v130
        v_lshl_or_b32 v156, v156, 5, v135
        v_lshl_or_b32 v156, v130, 8, v156
        v_accvgpr_write_b32 a{aPARK + 3}, v156
        v_lshl_or_b32 v156, v130, 8, v155
        v_add_u32 v{vXB}, {XS}, v156
        v_xor_b32 v{vXB + 1}, 64, v{vXB}
        v_and_b32 v156, 7, v129
        v_xor_b32 v156, v156, v130
        v_lshlrev_b32 v156, 4, v156
        v_lshl_or_b32 v156, v147, 5, v156
        v_lshl_or_b32 v156, v146, 10, v156
        s_lshl_b32 s{sT0}, s{sW}, 14
        s_add_u32 s{sT0}, s{sT0}, {XS}
        v_add_u32 v60, s{sT0}, v156
        v_xor_b32 v61, 64, v60
        v_xor_b32 v62, 128, v60
        v_xor_b32 v63, 192, v60''')
        for q in range(4):
            e(f'v_mov_b32 v{vMINIT + q}, 0xff800000')
        e(f'''s_mul_i32 s{sT0}, s{sG}, 7
        s_and_b32 s{sT1}, s{sG}, 1
        s_sub_u32 s{sT2}, s{sT0}, s{sT1}
        s_lshl_b32 s{sT3}, s{sW}, 1
        s_add_u32 s{sT2}, s{sT2}, s{sT3}
        s_mul_i32 s{sH0}, s{sR}, {HROW}
        s_lshl_b32 s{sT3}, s{sT2}, 12
        s_add_u32 s{sH0}, s{sH0}, s{sT3}
        s_add_u32 s{sH1}, s{sH0}, 4096
        s_add_u32 s{sT3}, s{sT2}, 1
        s_cmp_lt_i32 s{sT2}, s{sT0}
        s_cselect_b32 s{sH0}, 0x40000000, s{sH0}
        s_add_u32 s{sT0}, s{sT0}, 7
        s_cmp_ge_i32 s{sT3}, s{sT0}
        s_cselect_b32 s{sH1}, 0x40000000, s{sH1}
        s_lshl_b32 s{sHSO}, s{sR}, 10
        s_lshl_b32 s{sT0}, s{sW}, 8
        s_lshl_b32 s{sT1}, s{sG}, 2
        s_add_u32 s{sHSO}, s{sHSO}, s{sT0}
        s_add_u32 s{sHSO}, s{sHSO}, s{sT1}
        s_add_u32 s{sHSO}, s{sHSO}, {FOFF}
        s_mov_b32 s{sC1}, {f32(-SQRT128)}
        s_mov_b32 s{sC2}, {f32(C_SCALE)}
        s_add_u32 s{sT1}, s{sKA}, 4096
        s_add_u32 s{sT2}, s{sKA}, 8192
        s_add_u32 s{sT3}, s{sKA}, 12288
        s_mov_b32 s{sT0}, s{sKA}
        s_waitcnt lgkmcnt(0)''')
        self.stamp('karg')
        for rg in range(4):
            for c in range(4):
                r = 192 + (rg * 4 + c) * 4
                self.p.add(self.VM(f'buffer_load_dwordx4 {v(r, 4)}, v131, {srd(SRD_X)}, s{sT0 + rg} offen offset:{256 * c}', ('x', rg)))
        self.stamp('xiss')
        e(f'''s_mov_b32 s{sWI}, s{sKB}
        s_mov_b32 s{sFLAG}, s{sHSO}
        s_lshl_b32 s{sT0}, s{sG}, 19
        s_add_u32 s{SRD_K}, s{SRD_K}, s{sT0}
        s_addc_u32 s{SRD_K + 1}, s{SRD_K + 1}, 0
        s_add_u32 s{SRD_V}, s{SRD_V}, s{sT0}
        s_addc_u32 s{SRD_V + 1}, s{SRD_V + 1}, 0
        s_sub_u32 s{SRD_K + 2}, 0x400000, s{sT0}
        s_sub_u32 s{SRD_V + 2}, 0x400000, s{sT0}''')

    def layernorm(self):
        e = self.p.e
        X = lambda rg, n: 64 + 32 * rg + n
        acc = lambda rg: 32 + 2 * rg
        st = lambda rg: 40 + 2 * rg
        for rg in range(4):
            self.p.add(self.wait(vm=('x', rg)))
            if rg == 0:
                self.stamp('LNc')
                self.p.add(self.VM(f'buffer_load_dword a253, v50, {srd(SRD_WG)}, 0 offen', 'warm'))
                self.p.add(self.VM(f'buffer_load_dword a254, v50, {srd(SRD_WU)}, 0 offen', 'warm'))
            for n in range(16):
                r = 192 + rg * 16 + n
                e(f'v_lshlrev_b32 v{X(rg, 2 * n)}, 16, v{r}\nv_and_b32 v{X(rg, 2 * n + 1)}, 0xffff0000, v{r}')
            e(f'v_pk_add_f32 {v(acc(rg), 2)}, {v(X(rg, 0), 2)}, {v(X(rg, 2), 2)}')
            e(f'v_pk_add_f32 {v(48, 2)}, {v(X(rg, 4), 2)}, {v(X(rg, 6), 2)}')
            for n in range(4, 16, 2):
                e(f'v_pk_add_f32 {v(acc(rg), 2)}, {v(acc(rg), 2)}, {v(X(rg, 2 * n), 2)}')
                e(f'v_pk_add_f32 {v(48, 2)}, {v(48, 2)}, {v(X(rg, 2 * n + 2), 2)}')
            e(f'v_pk_add_f32 {v(acc(rg), 2)}, {v(acc(rg), 2)}, {v(48, 2)}')

        self.stamp('LN2')
        body = []
        e = lambda t: body.extend(I(x.strip()) for x in t.strip().split('\n'))

        def rowsum():
            for rg in range(4):
                e(f'v_add_f32 v{st(rg)}, v{acc(rg)}, v{acc(rg) + 1}')
            for sh in (8, 4, 2, 1):
                for rg in range(4):
                    e(f'v_add_f32_dpp v{st(rg)}, v{st(rg)}, v{st(rg)} row_ror:{sh} row_mask:0xf bank_mask:0xf')
        rowsum()
        for rg in range(4):
            e(f'v_mul_f32 v{st(rg)}, {f32(-1.0 / 512)}, v{st(rg)}')
        for n in range(16):
            for rg in range(4):
                e(f'v_pk_add_f32 {v(X(rg, 2 * n), 2)}, {v(X(rg, 2 * n), 2)}, {v(st(rg), 2)} op_sel_hi:[1,0]')
        for n in range(16):
            for rg in range(4):
                x = v(X(rg, 2 * n), 2)
                e(f'v_pk_mul_f32 {v(acc(rg), 2)}, {x}, {x}' if n == 0 else f'v_pk_fma_f32 {v(acc(rg), 2)}, {x}, {x}, {v(acc(rg), 2)}')
        rowsum()
        e(f'v_mov_b32 v48, {f32(1e-5)}')
        for rg in range(4):
            e(f'v_fmamk_f32 v{st(rg)}, v{st(rg)}, {f32(1.0 / 512)}, v48')
        for rg in range(4):
            e(f'v_rsq_f32 v{st(rg)}, v{st(rg)}')
        for rg in range(4):
            e(f'v_mul_f32 v{st(rg)}, {f32(C_SCALE)}, v{st(rg)}')
        for rg in range(4):
            for n in range(16):
                e(f'v_pk_mul_f32 {v(X(rg, 2 * n), 2)}, {v(X(rg, 2 * n), 2)}, {v(st(rg), 2)} op_sel_hi:[1,0]')
            for n in range(16):
                e(f'v_cvt_pk_bf16_f32 v{192 + rg * 16 + n}, v{X(rg, 2 * n)}, v{X(rg, 2 * n + 1)}')
            for c in range(4):
                body.append(self.LG(f'ds_write_b128 v{60 + rg}, {v(192 + rg * 16 + 4 * c, 4)} offset:{4096 * c}', 'xsw', tag='xs',
                                    lds_w=lambda w, t, c=c: [(XS + w * 16384 + c * 4096, XS + w * 16384 + c * 4096 + 4096)]))
        mem = []
        for m in range(5):
            for pc in range(4):
                mem.append(lambda m=m, pc=pc: [self.dma12(m, pc)] + (self.dma12_setup(m + 1) if pc == 3 else []))
        mem.append(lambda: self.warm_gu(1))
        self.p.add(self.dma12_setup(0))
        self.p.add(sprinkle(body, mem, LNSTART, LNEVERY))
        self.stamp('LNbar')
        self.p.e('s_waitcnt lgkmcnt(0)\ns_barrier')
        self.stamp('P1pre')

    def warm_gu(self, k):
        return [I(f's_mov_b32 s{sT0}, {k * 128 * 3584}'),
                self.VM(f'buffer_load_dword v{53 + k}, v50, {srd(SRD_WG)}, s{sT0} offen', 'warm'),
                self.VM(f'buffer_load_dword v{56 + k}, v50, {srd(SRD_WU)}, s{sT0} offen', 'warm')]

    def warm_q(self, k):
        return [I(f's_mov_b32 s{sT0}, {k * (128 // GX) * 8192}'),
                self.VM(f'buffer_load_dword v{32 + k}, v52, {srd(SRD_WQ)}, s{sT0} offen', 'warm')]

    def dma12_setup(self, m):
        ks, half = (m % 32) // 2, m & 1
        if m < 32:
            so = ks * 32 * 3584
        else:
            so = ks * 32 * 8192 + 128 * half
        return [I(f's_add_u32 m0, s{sRING}, {pos12(m)}'), I(f's_mov_b32 s{sSO}, {so}')]

    def dma12(self, m, pc):
        s = (SRD_WU if m & 1 else SRD_WG) if m < 32 else SRD_WQ
        vo = (vD1 if m < 32 else vD2) + pc
        o = pos12(m) + 1024 * pc
        return self.VM(f'buffer_load_dwordx4 v{vo}, {srd(s)}, s{sSO} offen offset:{1024 * pc} lds', ('u12', m), tag=('u12', m),
                       lds_w=lambda w, t: [(ring12(w) + o, ring12(w) + o + 1024)])

    def aread12(self, m, t):
        o = pos12(m)
        r = aA + 4 * ((4 * m + t) % 6)
        return [self.LG(f'ds_read_b64_tr_b16 {a_(r + 2 * u, 2)}, v{vPA12 + t} offset:{o + 512 * u}', ('a12', m, t),
                        lds_r=lambda w, tr: [(ring12(w) + o, ring12(w) + o + 4096)]) for u in range(2)]

    def bread12(self, ks, qb):
        k = ks % 16
        o = qb * 16384 + k * 1024
        return self.LG(f'ds_read_b128 {a_(aB + 16 * (ks & 1) + 4 * qb, 4)}, v{vXB + (k & 1)} offset:{o}', ('b12', ks),
                       lds_r=lambda w, t: [(XS + o, XS + o + 1024)])

    def kdma(self, c, pc, so):
        o = (c & 3) * 16384 + 1024 * pc
        return self.VM(f'buffer_load_dwordx4 v{vKD + pc}, {srd(SRD_K)}, s{so} offen offset:{1024 * pc} lds', ('K', c), tag=('K', c),
                       lds_w=lambda w, t: [(o + w * 4096, o + w * 4096 + 1024)])

    def vdma(self, c, pc, so):
        o = VBASE + ((c + 3) & 3) * 16384 + 1024 * pc
        return self.VM(f'buffer_load_dwordx4 v{vVD + (pc & 1)}, {srd(SRD_V)}, s{so} offen offset:{1024 * pc} lds', ('V', c), tag=('V', c),
                       lds_w=lambda w, t: [(o + w * 4096, o + w * 4096 + 1024)])

    def glu_epilogue(self):
        out = []
        for kap in range(2):
            for qb in range(4):
                for tt in range(2):
                    t = 2 * kap + tt
                    g = vGATE + (t * 4 + qb) * 4
                    u = aUP + (t * 4 + qb) * 4
                    h = vH + (kap * 4 + qb) * 4 + 2 * tt
                    out += [I(f'v_mul_f32 v{g + r}, s{sC1}, v{g + r}') for r in range(4)]
                    for r in range(4):
                        out += [I(f'v_exp_f32 v{g + r}, v{g + r}'), I(f'v_accvgpr_read_b32 v{vUT + r}, a{u + r}')]
                    out += [I(f'v_fma_f32 v{g + r}, v{g + r}, s{sC2}, s{sC2}') for r in range(4)]
                    out += [I(f'v_rcp_f32 v{g + r}, v{g + r}') for r in range(4)]
                    out += [I(f'v_mul_f32 v{g + r}, v{g + r}, v{vUT + r}') for r in range(4)]
                    out += [I(f'v_cvt_pk_bf16_f32 v{h}, v{g}, v{g + 1}'), I(f'v_cvt_pk_bf16_f32 v{h + 1}, v{g + 2}, v{g + 3}')]
        return out

    def gemm12(self):
        p = self.p
        p.add(self.wait(vm=('u12', 0)))
        for qb in range(4):
            p.add(self.bread12(0, qb))
        for t in range(4):
            p.add(self.aread12(0, t))
        p.add(self.wait(vm=('u12', 1), lg=('a12', 0, 1)))
        for ph in range(2):
            self.stamp('P1' if ph == 0 else 'P2')
            mf, fx = [], {}
            for m in range(32 * ph, 32 * ph + 32):
                ks, half = m // 2, m & 1
                if m in (8, 16, 24):
                    p.add(fill(mf, fx))
                    mf, fx = [], {}
                    self.stamp('P1_%d' % m)
                for t in range(4):
                    g0 = len(mf)
                    A = a_(aA + 4 * ((4 * m + t) % 6), 4)
                    for qb in range(4):
                        if ph == 0:
                            d = (v(vGATE + (t * 4 + qb) * 4, 4) if half == 0 else a_(aUP + (t * 4 + qb) * 4, 4))
                        else:
                            d = v(vACC + ((4 * half + t) * 4 + qb) * 4, 4)
                        c = '0' if ks % 16 == 0 else d
                        mf.append(I(f'v_mfma_f32_16x16x32_bf16 {d}, {A}, {a_(aB + 16 * (ks & 1) + 4 * qb, 4)}, {c}'))
                    if m + 1 < 64:
                        fx[g0] = self.aread12(m + 1, t)
                    fx[g0 + 1] = []
                    if m + 5 < 64:
                        fx[g0 + 1].append(self.dma12(m + 5, t))
                    if m in (60, 61):
                        fx[g0 + 1].append(self.kdma(m - 61, t, sKA if m == 60 else sKB))
                    if half == 0 and ks + 1 < 32:
                        fx[g0 + 1].append(self.bread12(ks + 1, t))
                    if t == 3:
                        if m + 6 < 64:
                            fx[g0 + 2] = self.dma12_setup(m + 6)
                        if m in (2, 6):
                            fx[g0 + 2] += self.warm_gu(2 + (m - 2) // 4)
                        if 9 <= m < 9 + 8 * GX and m % 2 == 1 and (m - 9) // 2 < 4 * GX:
                            fx[g0 + 2] += self.warm_q((m - 9) // 2)
                        if m == 58:
                            fx[g0 + 2] = [I(f's_lshl_b32 s{sKB}, s{sW}, 12'), I(f's_add_u32 s{sKA}, s{sKB}, {(2048 - 32) * 256}'),
                                          I(f's_and_b32 s{sKA}, s{sKA}, 0x7ffff'), I(f's_add_u32 s{sKB}, s{sKB}, {32 * 256}')]
                        if m == 59:
                            fx[g0 + 2] = [I(f's_add_u32 m0, s{sM0K}, {3 * 16384}'), I('s_barrier')]
                        if m == 60:
                            fx[g0 + 2] = [I(f's_mov_b32 m0, s{sM0K}')]
                    if m == 34 and t == 0:
                        fx[g0 + 3] = [I(f's_mul_i32 s{sT0}, s{sWI}, {512 * GX}'), I(f'v_and_b32 v{vD1}, {4 * GX - 1}, v{vLANE}')]
                    if m == 34 and t == 1:
                        fx[g0 + 2] = [I(f'v_lshlrev_b32 v{vD1}, 7, v{vD1}'),
                                      self.VM(f'buffer_load_dword a252, v{vD1}, {srd(SRD_K)}, s{sT0} offen', 'warm')]
                    if m == 34 and t == 2:
                        fx[g0 + 2] = [self.VM(f'buffer_load_dword a253, v{vD1}, {srd(SRD_V)}, s{sT0} offen', 'warm')]
                    if t == 1:
                        fx[g0 + 3] = [self.wait(lg=('a12', m, 3))]
                    if t == 3 and m + 1 < 64:
                        fx[g0 + 3] = [self.wait(vm=('u12', m + 2) if m + 2 < 64 else None, lg=('a12', m + 1, 1))]
            bg = self.glu_epilogue() if ph == 1 else []
            p.add(fill(mf, fx, bg, bg_start=4, bg_end=len(mf) - 32))

    def kread(self, j, e):
        h = j + 1
        c, half = (h - 1) >> 1, (h - 1) & 1
        o = (c & 3) * 16384 + half * 8192 + (e >> 2) * 4096
        return self.LG(f'ds_read_b128 {a_(aKF + 4 * (e & 3), 4)}, v{vKA + (e & 3)} offset:{o}', ('kf', j, e),
                       lds_r=lambda w, t: [(o, o + 4096)])

    def vread(self, j, e, u):
        h = j - 1
        c, half = (h + 1) >> 1, (h + 1) & 1
        o = ((c + 3) & 3) * 16384 + half * 8192 + u * 4096
        return self.LG(f'ds_read_b64_tr_b16 {a_(aVF + 4 * (e & 3) + 2 * u, 2)}, v{vVA + e} offset:{o}', ('vf', j, e),
                       lds_r=lambda w, t: [(VBASE + o, VBASE + o + 4096)])

    def qk(self, j, e, czero=False):
        kb, ks = e >> 2, e & 3
        out = []
        for qb in range(4):
            d = v(vS + 32 * ((j + 1) & 1) + (kb * 4 + qb) * 4, 4)
            c = d if ks else ('0' if czero else v(vNEGM + 4 * qb, 4))
            out.append(I(f'v_mfma_f32_16x16x32_bf16 {d}, {a_(aKF + 4 * (e & 3), 4)}, {v(vQ + (ks * 4 + qb) * 4, 4)}, {c}'))
        return out

    def pv(self, j, e):
        out = []
        for qb in range(4):
            d = oreg(e, qb)
            out.append(I(f'v_mfma_f32_16x16x32_bf16 {d}, {a_(aVF + 4 * (e & 3), 4)}, {v(vP + 16 * ((j - 1) & 1) + 4 * qb, 4)}, {"0" if j == 1 else d}'))
        return out

    def lsum(self, j, qb):
        d = a_(aL + 4 * qb, 4)
        return I(f'v_mfma_f32_16x16x32_bf16 {d}, {a_(aONE, 4)}, {v(vP + 16 * ((j - 1) & 1) + 4 * qb, 4)}, {"0" if j == 1 else d}')

    def step(self, j, extra=None, steady=False):
        extra = extra or {}
        hasq, hasv, hass = j + 1 <= 63, j >= 1, j <= 63
        out = []
        n = j >> 1
        for e in range(8):
            mf = (self.qk(j, e) if hasq else []) + (self.pv(j, e) if hasv else [])
            j2, e2 = (j, e + 2) if e < 6 else (j + 1, e - 6)
            rd = []
            if j2 + 1 <= 63:
                rd.append(lambda: self.kread(j2, e2))
            if 1 <= j2 <= 64:
                rd += [lambda: self.vread(j2, e2, 0), lambda: self.vread(j2, e2, 1)]
            s = vS + 32 * (j & 1) + 4 * e
            pr = vP + 16 * (j & 1) + 4 * (e & 3) + 2 * (e >> 2)
            ex = [I(f'v_exp_f32 v{s + r}, v{s + r}') for r in range(4)] if hass else []
            cv = [I(f'v_cvt_pk_bf16_f32 v{pr + r}, v{s + 2 * r}, v{s + 2 * r + 1}') for r in range(2)] if hass else []

            def misc():
                m = []
                if e < 4 and j % 2 == 0 and n + 2 <= 31 and j <= 63:
                    m.append(self.kdma(n + 2, e, sKA if n % 2 == 0 else sKB))
                if e < 4 and j % 2 == 1 and n + 2 <= 32:
                    m.append(self.vdma(n + 2, e, sKB if n % 2 == 0 else sKA))
                if e == 7 and j % 2 == 0 and n + 2 <= 32:
                    m.append(I(f's_add_u32 m0, s{sM0K}, {VBASE + ((n + 2 + 3) & 3) * 16384}'))
                if e == 7 and j % 2 == 1 and n + 3 <= 32:
                    new, old = (sKB, sKA) if n % 2 == 0 else (sKA, sKB)
                    m.append(I(f's_add_u32 s{new}, s{old}, 16384'))
                    if n + 3 <= 31:
                        m.append(I(f's_add_u32 m0, s{sM0K}, {((n + 3) & 3) * 16384}'))
                if (e, 'misc') in extra:
                    m += extra[(e, 'misc')]()
                return m

            def lwait():
                j1, e1 = (j, e + 1) if e < 7 else (j + 1, 0)
                tags = []
                if j1 + 1 <= 63:
                    tags.append(('kf', j1, e1))
                if 1 <= j1 <= 64:
                    tags.append(('vf', j1, e1))
                return [self.wait(lg=tags[-1])] if tags else []

            if len(mf) == 8:
                g = {0: [ex[0]], 2: [ex[1]], 4: [ex[2]], 6: [ex[3]]}
                g[1] = [f() for f in rd[:2]]
                g[3] = [f() for f in rd[2:]] + [cv[0]]
                g[5] = misc()
                g[7] = [cv[1]] + lwait()
            else:
                g = {0: ex[0:1] + [f() for f in rd[:1]]}
                g[1] = ex[1:2] + [f() for f in rd[1:2]]
                g[2] = ex[2:3] + [f() for f in rd[2:]] + cv[0:1]
                g[3] = ex[3:4] + misc()
                g[3] += (lwait() or ([I('s_nop 0')] if hass else [])) + cv[1:2]
            for k, m in enumerate(mf):
                out.append(m)
                out += g.get(k, [])
            if e & 1:
                tail = []
                if e == 5 and j % 2 == 1 and j <= 63:
                    tail += [I('s_waitcnt vmcnt(9)') if steady else self.wait(vm=('V', n + 1)), I('s_barrier')]
                if e == 5 and j == 0:
                    tail += [self.wait(vm=('V', 0)), I('s_barrier')]
                if (e, 'sum') in extra:
                    tail += extra[(e, 'sum')]()
                if hasv:
                    out.append(self.lsum(j, e >> 1))
                out += tail
        if steady:
            drop = lambda x: isinstance(x, I) and (('bar' in ABL and x.op == 's_barrier') or ('sum' in ABL and x.kind == 'mfma' and a_(aONE, 4) in x.text)
                                                   or ('exp' in ABL and x.kind == 'trans') or ('dma' in ABL and x.kind == 'vmem') or ('ds' in ABL and x.kind == 'ds')
                                                   or ('cvt' in ABL and 'cvt' in x.op) or ('vmw' in ABL and x.kind == 'wait' and x.vm is not None))
            out = [x for x in out if not drop(x)]
        self.p.add(out)

    def attn_prologue(self):
        p, e = self.p, self.p.e
        self.stamp('Qepi')
        e('s_barrier')
        e(f'''v_accvgpr_read_b32 v{vVD}, a{aPARK + 3}
        s_add_u32 m0, s{sM0K}, {VBASE + 3 * 16384}
        v_xor_b32 v{vVD + 1}, 128, v{vVD}
        v_lshlrev_b32 v{vL16}, 4, v{vLANE}
        v_mov_b32 v{vTMP}, 0''')
        mem = []
        for pc in range(4):
            mem.append(lambda pc=pc: [self.vdma(0, pc, sKA)] + ([I(f's_add_u32 s{sKA}, s{sKB}, 16384'), I(f's_add_u32 m0, s{sM0K}, 16384')] if pc == 3 else []))
        for pc in range(4):
            mem.append(lambda pc=pc: [self.kdma(1, pc, sKA)] + ([I(f's_add_u32 m0, s{sM0K}, {VBASE}')] if pc == 3 else []))
        for pc in range(4):
            mem.append(lambda pc=pc: [self.vdma(1, pc, sKB)])
        for hf in range(2):
            mem.append(lambda hf=hf: [self.VM(f'buffer_store_dword v{vTMP}, off, {srd(SRD_WS)}, s{sFLAG} offset:{128 * hf} sc1', 'hst')])
        for kap in range(2):
            for qb in range(4):
                mem.append(lambda kap=kap, qb=qb: [self.VM(f'buffer_store_dwordx4 {v(vH + (kap * 4 + qb) * 4, 4)}, v{vL16}, {srd(SRD_WS)}, s{sH0 + kap} offen offset:{1024 * qb} sc1', 'hst')])
        keep, self.p = self.p, Prog()
        e = self.p.e
        for ks in range(4):
            for qb in range(4):
                q = vQ + (ks * 4 + qb) * 4
                x, y = vACC + ((2 * ks) * 4 + qb) * 4, vACC + ((2 * ks + 1) * 4 + qb) * 4
                e(f'''v_cvt_pk_bf16_f32 v{q}, v{x}, v{x + 1}
                v_cvt_pk_bf16_f32 v{q + 1}, v{x + 2}, v{x + 3}
                v_cvt_pk_bf16_f32 v{q + 2}, v{y}, v{y + 1}
                v_cvt_pk_bf16_f32 v{q + 3}, v{y + 2}, v{y + 3}''')
            if ks:
                self.qswap(ks - 1)
        e(f'v_accvgpr_read_b32 v{vKA}, a{aPARK + 2}\nv_accvgpr_read_b32 v{vVA}, a{aPARK + 1}')
        self.qswap(3)
        for t in range(1, 4):
            e(f'v_xor_b32 v{vKA + t}, {64 * t}, v{vKA}')
        for t in range(1, 8):
            e(f'v_xor_b32 v{vVA + t}, {32 * t}, v{vVA}')
        e(f'v_mov_b32 v{vTMP + 1}, 0x3f803f80')
        for r in range(4):
            e(f'v_accvgpr_write_b32 a{aONE + r}, v{vTMP + 1}')
        body, self.p = self.p.items, keep
        e = self.p.e
        p.add(sprinkle(body, mem[:14], 1, 10))
        self.late_mem = mem[14:]
        self.stamp('Aprol')
        for f in self.late_mem:
            p.add(f())
        e('L_attn:')
        p.add(self.wait(vm=('K', 0)))
        e('s_barrier')
        for k in range(2):
            p.add(self.kread(-1, k))
        for k in range(8):
            if k + 2 < 8:
                p.add(self.kread(-1, k + 2))
            p.add(self.wait(lg=('kf', -1, k)))
            p.add(self.qk(-1, k, czero=True))
        e(f's_mov_b32 s{sSO2}, s{sKA}\ns_add_u32 s{sKA}, s{sKA}, 16384\ns_mov_b32 s{sKB}, s{sSO2}\ns_add_u32 m0, s{sM0K}, {2 * 16384}')
        p.add(self.kread(0, 0))
        p.add(self.kread(0, 1))
        e('s_nop 1')
        for qb in range(4):
            s0, s1, m = vS + 4 * qb, vS + 16 + 4 * qb, vNEGM + 4 * qb
            e(f'''v_max3_f32 v{m}, v{s0}, v{s0 + 1}, v{vMINIT + qb}
            v_max3_f32 v{m + 1}, v{s0 + 2}, v{s0 + 3}, v{s1}
            v_max3_f32 v{m}, v{m}, v{s1 + 1}, v{s1 + 2}
            v_max3_f32 v{m}, v{m}, v{m + 1}, v{s1 + 3}''')
        for op in ('v_permlane32_swap_b32', 'v_permlane16_swap_b32'):
            for qb in range(4):
                e(f'v_mov_b32 v{vNEGM + 4 * qb + 1}, v{vNEGM + 4 * qb}')
            for qb in range(4):
                e(f'{op} v{vNEGM + 4 * qb}, v{vNEGM + 4 * qb + 1}')
            for qb in range(4):
                e(f'v_max_f32 v{vNEGM + 4 * qb}, v{vNEGM + 4 * qb}, v{vNEGM + 4 * qb + 1}')
        for qb in range(4):
            m = vNEGM + 4 * qb
            e(f'v_sub_f32 v{m}, 0, v{m}')
            for r in range(1, 4):
                e(f'v_mov_b32 v{m + r}, v{m}')
        for kb in range(2):
            for qb in range(4):
                for r in range(4):
                    s = vS + (kb * 4 + qb) * 4 + r
                    e(f'v_add_f32 v{s}, v{s}, v{vNEGM + 4 * qb}')
        p.add(self.wait(lg=('kf', 0, 0)))

    def qswap(self, ks):
        e = self.p.e
        for op in ('v_permlane32_swap_b32', 'v_permlane16_swap_b32'):
            for qb in range(4):
                q = vQ + (ks * 4 + qb) * 4
                e(f'{op} v{q}, v{q + 2}\n{op} v{q + 1}, v{q + 3}')

    def flag_add(self, label, sidx, base):
        return [I(f's_or_b32 s{sT0}, s{sW}, s{sMODE}'),
                I(f's_cmp_lg_u32 s{sT0}, 0'),
                I(f's_cbranch_scc1 {label}'),
                I(f's_lshl_b32 s{sT0}, s{sidx}, 2'),
                I(f'v_mov_b32 v{vTMP}, 1'),
                I('s_mov_b64 exec, 1'),
                I(f'buffer_atomic_add v{vTMP}, off, {srd(SRD_DBG)}, s{sT0} offset:{base}'),
                I('s_mov_b64 exec, -1'),
                I(f'{label}:')]

    def poll(self, label, reg, base):
        p = self.p
        p.e(f'''v_readfirstlane_b32 s{sT0}, v{reg}
        s_lshl_b32 s{sT1}, s{sRB}, 2
        s_cmp_ge_u32 s{sT0}, 8
        s_cbranch_scc1 {label}_ok''')
        p.mark('off')
        p.e(f'''s_mov_b32 s{sT2}, 0x200000
        {label}_spin:
        s_sub_u32 s{sT2}, s{sT2}, 1
        s_cbranch_scc1 {label}_ok
        s_sleep 2
        buffer_load_dword v{reg}, off, {srd(SRD_DBG)}, s{sT1} offset:{base} sc1
        s_waitcnt vmcnt(0)
        v_readfirstlane_b32 s{sT0}, v{reg}
        s_nop 0
        s_cmp_ge_u32 s{sT0}, 8
        s_cbranch_scc0 {label}_spin''')
        p.mark('on')
        p.e(f'{label}_ok:')

    def attention(self):
        p = self.p
        self.stamp('Attn')
        for j in range(8):
            extra = {}
            if j == 5:
                extra[(7, 'sum')] = lambda: self.flag_add('L_hflag', sR, 128)
            if j == 7:
                extra[(6, 'misc')] = lambda: [I(f's_mov_b32 s{sWA}, 0x40000000'),
                                              self.VM(f'buffer_load_dword a255, off, {srd(SRD_WO)}, s{sWA}', 'warm')]
            self.step(j, extra)
        self.stamp('Aloop')
        p.e(f'''s_mul_i32 s{sH0}, s{sWI}, {4096 * GX}
        s_lshl_b32 s{sT0}, s{sG}, 19
        s_add_u32 s{sH0}, s{sH0}, s{sT0}
        s_lshr_b32 s{sT0}, s2, 3
        s_lshl_b32 s{sT0}, s{sT0}, 2
        s_add_u32 s{sT0}, s{sT0}, s{sW}
        s_mul_i32 s{sH1}, s{sT0}, 14336
        v_and_b32 v{vTMP}, {16 * GX - 1}, v{vLANE}
        v_lshlrev_b32 v{vTMP}, 7, v{vTMP}
        v_min_u32 v{vTMP + 2}, 27, v{vLANE}
        v_lshlrev_b32 v{vTMP + 2}, 7, v{vTMP + 2}
        s_mov_b32 s{sCNT}, 5
        .p2align 3
        L_loop:''')
        p.mark('loop', 6)
        for j in range(8, 16):
            extra = {}
            if j == 8:
                extra[(4, 'misc')] = lambda: [I(f's_cmp_eq_u32 s{sCNT}, 0'), I(f's_cselect_b32 s{sWA}, s{sH0}, 0x40000000')]
                extra[(5, 'misc')] = lambda: [I(f's_cmp_eq_u32 s{sCNT}, 0'), I(f's_cselect_b32 s{sWB}, s{sH1}, 0x40000000')]
            if j == 9:
                extra[(6, 'misc')] = lambda: [self.VM(f'buffer_load_dword a252, v{vTMP}, {srd(SRD_WO)}, s{sWA} offen', 'warm'),
                                              I(f's_add_u32 s{sWA}, s{sWA}, {2048 * GX}')]
            if j == 11:
                extra[(6, 'misc')] = lambda: [self.VM(f'buffer_load_dword a253, v{vTMP}, {srd(SRD_WO)}, s{sWA} offen', 'warm')]
            if j in (13, 15):
                extra[(6, 'misc')] = lambda j=j: [self.VM(f'buffer_load_dword a{254 + (j - 13) // 2}, v{vTMP + 2}, {srd(SRD_WD)}, s{sWB} offen offset:{3584 * ((j - 13) // 2)}', 'warm')]
            if j == 15:
                extra[(7, 'sum')] = lambda: [I(f's_sub_u32 s{sCNT}, s{sCNT}, 1'), I('s_cbranch_scc0 L_loop')]
            self.step(j, extra, steady=True)
        p.mark('endloop')
        self.stamp('Alast')
        sh = lambda t: (t[0], t[1] + 20) if t[0] in ('K', 'V') else ((t[0], t[1] + 40, t[2]) if t[0] in ('kf', 'vf') else t)
        self.vm = [sh(t) if isinstance(t, tuple) else t for t in self.vm[-24:]]
        self.lg = [sh(t) if isinstance(t, tuple) else t for t in self.lg[-16:]]
        hq = [(m, qb) for m in range(32, 32 + NPRE) for qb in range(4)]
        for j in range(56, 64):
            extra = {}
            if j == 56:
                extra[(4, 'misc')] = lambda: [I(f's_lshl_b32 s{sT1}, s{sRB}, 2'), I(f's_add_u32 s{sWB}, s{sH1}, {2 * 3584}')]
                extra[(5, 'misc')] = lambda: [self.VM(f'buffer_load_dword v{vTMP + 1}, off, {srd(SRD_DBG)}, s{sT1} offset:128 sc1', 'hpoll')]
            if j == 57:
                extra[(6, 'misc')] = lambda: [self.VM(f'buffer_load_dword a252, v{vTMP + 2}, {srd(SRD_WD)}, s{sWB} offen', 'warm')]
            if j == 59:
                extra[(6, 'misc')] = lambda: [self.VM(f'buffer_load_dword a253, v{vTMP + 2}, {srd(SRD_WD)}, s{sWB} offen offset:3584', 'warm')]
                extra[(7, 'sum')] = lambda: self.hwarm()
            if j in (60, 61):
                for k in (4, 5, 6):
                    extra[(k, 'misc')] = lambda: self.hload(*hq.pop(0)) + self.hload(*hq.pop(0))
                for k in (1, 3):
                    extra[(k, 'sum')] = lambda: self.hload(*hq.pop(0)) + self.hload(*hq.pop(0))
            if j in (62, 63):
                for k in (1, 3):
                    extra[(k, 'sum')] = lambda: self.hload(*hq.pop(0)) + self.hload(*hq.pop(0))
            if j in (60, 62):
                extra[(5, 'sum')] = lambda j=j: self.final_loads(j - 60) + self.final_loads(j - 59)
            if j == 62:
                extra[(0, 'misc')] = lambda: self.dma45_setup(0)
                for k in range(4):
                    extra[(1 + k, 'misc')] = lambda k=k: [self.dma45(0, k)]
                extra[(5, 'misc')] = lambda: self.dma45_setup(1)
            if j == 63:
                for k in range(4):
                    extra[(k, 'misc')] = lambda k=k: [self.dma45(1, k)]
                extra[(7, 'misc')] = lambda: self.dma45_setup(2)
            self.step(j, extra)
        self.drain()

    def drain(self):
        inv = lambda qb: vNEGM + 2 * qb
        mf = [self.lsum(64, qb) for qb in range(4)]
        for e in range(8):
            mf += self.pv(64, e)
        fx = {}
        for g in range(36):
            e, k = (g - 4) >> 2, g & 3
            x = []
            if e >= 0 and k == 0 and e < 6:
                x += [self.vread(64, e + 2, 0), self.vread(64, e + 2, 1)]
            if g in (0, 1, 2, 3):
                x += [self.dma45(2, g)] + (self.dma45_setup(3) if g == 3 else [])
            if g in (5, 6, 9):
                x += [self.dma45(3, (5, 6, 9).index(g))]
            if g == 1:
                x += [I(f'v_and_b32 v201, 3, v{vLANE}')]
            if g == 2:
                x += [I('v_lshlrev_b32 v201, 13, v201')]
            if g == 5:
                x += [I(f's_lshl_b32 s{sT1}, s{sW}, 2')]
            if g == 6:
                x += [I(f's_add_u32 s{sT1}, s{sT1}, {VBASE + 8192 - 16}')]
            if g == 9:
                x += [I(f'v_add_u32 v201, s{sT1}, v201')]
            if g in (10, 13):
                q0 = 0 if g == 10 else 2
                x += [I(f'v_accvgpr_read_b32 v{inv(q) + 1}, a{aL + 4 * q}') for q in (q0, q0 + 1)]
            if g == 14:
                x += [I(f'v_add_f32 v200, v{inv(0) + 1}, v{inv(1) + 1}'), I(f'v_add_f32 v202, v{inv(2) + 1}, v{inv(3) + 1}')]
            if g == 17:
                x += [I('v_add_f32 v200, v200, v202'), I(f'v_cmp_nge_f32 vcc, {f32(2.0 ** 40)}, v200')]
            if g == 18:
                x += [I(f'v_mov_b32 v203, s{sR4}'), I('s_cmp_lg_u64 vcc, 0'), I(f's_cselect_b32 s{sT0}, 1, 0')]
            if g == 21:
                x += [I(f'v_mov_b32 v200, s{sT0}'),
                      self.LG('ds_write_b32 v201, v200', 'flagw', tag='flag',
                              lds_w=lambda w, t: [(VBASE + 8192 * n + 8192 - 16, VBASE + 8192 * n + 8192) for n in range(4)])]
            if g in (22, 25, 26, 29):
                q = (22, 25, 26, 29).index(g)
                x += [I(f'v_rcp_f32 v{inv(q)}, v{inv(q) + 1}')]
            if e >= 0 and k == 3 and e < 7:
                x += [self.wait(lg=('vf', 64, e + 1))]
            if g == 31:
                x += [I('s_barrier')]
            if g == 32:
                x += [self.LG('ds_read_b128 v[204:207], v203 offset:8176', 'flagr',
                              lds_r=lambda w, t: [(VBASE + 8192 * w + 8176, VBASE + 8192 * w + 8192)]),
                      I(f's_lshl_b32 s{sT0}, s{sW}, 12')]
            if g == 33:
                x += [I(f'v_add_u32 v202, s{sT0}, v{vL16}'), I(f'v_accvgpr_read_b32 v{vPA45}, a{aPARK}')]
            fx[g] = x
        self.p.add(fill(mf, fx))

    def hwarm(self):
        keep, self.p = self.p, Prog()
        self.poll('L_hp', vTMP + 1, 128)
        items, self.p = self.p.items, keep
        items += [I(f's_mul_i32 s{sHSO}, s{sRB}, {HROW}'), I(f's_mul_i32 s{sT0}, s{sW}, {14 * 4096}'), I(f's_add_u32 s{sHSO}, s{sHSO}, s{sT0}'),
                  I(f's_mul_i32 s{sT0}, s{sCB}, 3584'), I(f's_add_u32 s{sT0}, s{sT0}, s{sHSO}'), I(f's_add_u32 s{sT0}, s{sT0}, {NPRE * 4096}')]
        items.append(self.VM(f'buffer_load_dword a254, v{vTMP + 2}, {srd(SRD_WS)}, s{sT0} offen sc1', 'warm'))
        items += [I(f'v_and_b32 v{vTMP + 1}, 15, v{vLANE}'), I(f'v_lshrrev_b32 v{vTMP}, 4, v{vLANE}'), I(f'v_lshlrev_b32 v{vTMP}, 3, v{vTMP}'),
                  I(f'v_lshl_or_b32 v{vTMP + 1}, v{vTMP + 1}, 10, v{vTMP}'),
                  I(f's_lshl_b32 s{sXO}, s{sRB}, 16'), I(f's_lshl_b32 s{sT0}, s{sW}, 14'), I(f's_lshl_b32 s{sT1}, s{sCB}, 7'),
                  I(f's_add_u32 s{sXO}, s{sXO}, s{sT0}'), I(f's_add_u32 s{sXO}, s{sXO}, s{sT1}')]
        return items

    def dma45_setup(self, m):
        st, imm, at = pos45(m)
        m0 = I(f's_add_u32 m0, s{sR4}, {at(0) - VBASE}')
        if m < 32:
            first = [I(f's_lshl_b32 s{sSBASE}, s{sG}, 19'), I(f's_lshl_b32 s{sT0}, s{sW}, 8'), I(f's_add_u32 s{sSBASE}, s{sSBASE}, s{sT0}')] if m == 0 else []
            return first + [m0, I(f's_add_u32 s{sSO}, s{sSBASE}, {(m & 15) * 32768 + 128 * (m >> 4)}')]
        first = []
        if m == 32:
            first = [I(f's_mul_i32 s{sSO2}, s{sW}, {14 * 32768}'), I(f's_lshl_b32 s{sT0}, s{sCB}, 7'), I(f's_add_u32 s{sSO2}, s{sSO2}, s{sT0}')]
        return first + [m0, I(f's_add_u32 s{sSO}, s{sSO2}, {(m - 32) * 32768}')]

    def dma45(self, m, pc):
        at = pos45(m)[2]
        return self.VM(f'buffer_load_dwordx4 v{vD45 + pc}, {srd(SRD_WO if m < 32 else SRD_WD)}, s{sSO} offen offset:{1024 * pc} lds', ('u45', m),
                       tag=('u45', m), lds_w=lambda w, t: [(at(w) + 1024 * pc, at(w) + 1024 * pc + 1024)])

    def hload(self, m, qb):
        out = [I(f's_add_u32 s{sHSO}, s{sHSO}, 4096')] if (qb == 0 and m > 32) else []
        return out + [self.VM(f'buffer_load_dwordx4 {a_(aHF[m - 32] + 4 * qb, 4)}, v{vL16}, {srd(SRD_WS)}, s{sHSO} offen offset:{1024 * qb} sc1', ('u45', m))]

    def hload2(self, m, qb):
        d = m - (32 + NPRE + H_OEPI + H_P4B - 1)
        return [I(f's_add_u32 s{sT2}, s{sHSO}, {4096 * d}'),
                self.VM(f'buffer_load_dwordx4 {a_(aHF[m - 32] + 4 * qb, 4)}, v{vL16}, {srd(SRD_WS)}, s{sT2} offen offset:{1024 * qb} sc1', ('u45', m))]

    def aread45(self, n):
        m, t = GROUPS45[n]
        st, imm, at = pos45(m)
        r = vA4 + 4 * (n % 6)
        return [self.LG(f'ds_read_b64_tr_b16 {v(r + 2 * u, 2)}, v{vPA45S[st] + t} offset:{imm + 2048 * u}', ('a45', n),
                        lds_r=lambda w, tr: [(at(w), at(w) + 4096)]) for u in range(2)]

    def bread4(self, m, qb):
        o = qb * 16384 + (m & 15) * 1024
        return self.LG(f'ds_read_b128 {v(vB4 + 16 * (m % 3) + 4 * qb, 4)}, v{vL16} offset:{o}', ('b4', m), lds_r=lambda w, t: [(o, o + 1024)])

    def o_epilogue(self):
        p, e = self.p, self.p.e
        self.stamp('Oepi')
        inv = lambda qb: vNEGM + 2 * qb
        for t in range(1, 4):
            e(f'v_xor_b32 v{vPA45 + t}, {32 * t}, v{vPA45}')
        for t in range(4):
            e(f'v_add_u32 v{vPA45 + 4 + t}, {64 * K1}, v{vPA45 + t}')
        p.add(self.wait(lg='flagr'))
        e(f'''v_or3_b32 v204, v204, v205, v206
        v_or_b32 v204, v204, v207
        s_nop 0
        v_readfirstlane_b32 s{sT0}, v204
        s_nop 0
        s_andn2_b32 s{sT0}, s{sT0}, s{sMODE}
        s_cbranch_scc1 L_fallback''')
        p.add(self.dma45(3, 3))
        p.add(self.dma45_setup(4))
        k = 0
        hq = [(m, qb) for m in range(32 + NPRE, 32 + NPRE + H_OEPI) for qb in range(4)]
        for ks in range(4):
            for qb in range(4):
                t = vS + 16 * (k % 4)
                k += 1
                for tt in range(2):
                    if 2 * ks + tt < 5:
                        for r in range(4):
                            e(f'v_accvgpr_read_b32 v{t + 4 * tt + r}, {oreg(2 * ks + tt, qb, 1, r)}')
                for r in range(4):
                    db = 2 * ks + (r >> 1)
                    src = v(t + 2 * r, 2) if db < 5 else oreg(db, qb, 2, 2 * (r & 1))
                    e(f'v_pk_mul_f32 {v(t + 2 * r, 2)}, {src}, {v(inv(qb), 2)} op_sel_hi:[1,0]')
                for r in range(4):
                    e(f'v_cvt_pk_bf16_f32 v{t + 8 + r}, v{t + 2 * r}, v{t + 2 * r + 1}')
                o = qb * 16384 + ks * 1024
                p.add(self.LG(f'ds_write_b128 v202, {v(t + 8, 4)} offset:{o}', 'oxw', tag='ox',
                              lds_w=lambda w, tr, o=o: [(o + w * 4096, o + w * 4096 + 1024)]))
                for _ in range(1 if H_OEPI <= 4 else 2):
                    if hq:
                        p.add(self.hload(*hq.pop(0)))
        p.add(self.wait(vm=('u45', 0)))
        for t in range(4):
            p.add(self.aread45(t))
        p.add(self.wait(lg='oxw'))
        e('s_barrier')
        for m in range(2):
            for qb in range(4):
                p.add(self.bread4(m, qb))
        for pc in range(4):
            p.add(self.dma45(4, pc))
        p.add(self.dma45_setup(5))
        p.add(self.wait(vm=('u45', 1), lg=('b4', 0)))

    def unit45(self, u, mf, fx, early):
        NU = 46
        req = [(m, pc) for m in issue45(u) for pc in range(4)]
        for k in range(4):
            n = 4 * u + k
            m, t = GROUPS45[n]
            g0 = len(mf)
            A = v(vA4 + 4 * (n % 6), 4)
            for qb in range(4):
                if m < 32:
                    d = v(vACC + ((4 * (m >> 4) + t) * 4 + qb) * 4, 4)
                    B, c = v(vB4 + 16 * (m % 3) + 4 * qb, 4), ('0' if m % 16 == 0 else d)
                else:
                    d = v(self.acc5(t, qb), 4)
                    B, c = a_(aHF[m - 32] + 4 * qb, 4), ('0' if m == 32 else d)
                mf.append(I(f'v_mfma_f32_16x16x32_bf16 {d}, {A}, {B}, {c}'))
            if n + 4 < 4 * NU:
                fx[g0] = self.aread45(n + 4)
            fx[g0 + 1] = []
            for _ in range(len(issue45(u))):
                mm, pc = req.pop(0)
                fx[g0 + 1].append(self.dma45(mm, pc))
                if pc == 3 and req:
                    fx[g0 + 1] += self.dma45_setup(req[0][0]) + [I('s_nop 0')]
            if u + 2 < 32:
                fx[g0 + 1].append(self.bread4(u + 2, k))
            x = []
            if u >= 16 and (u - 16) % SPREAD == 0 and (u - 16) // SPREAD < 8 and k in (1, 2, 3):
                j = (u - 16) // SPREAD
                x += self.s_convert(j)[2 * k - 2:2 * k] if k < 3 else self.s_store(j)
            if u == 32:
                for j in (8 + 2 * k, 9 + 2 * k):
                    x += self.s_convert(j) + self.s_store(j)
            if 20 <= u < 20 + 2 * H_P4B and k in (0, 2):
                j = 2 * (u - 20) + (k >> 1)
                x += self.hload(32 + NPRE + H_OEPI + j // 4, j % 4)
            if u in (33, 34):
                for mm in range(32 + NPRE + H_OEPI + H_P4B + u - 33, 46, 2):
                    x += self.hload2(mm, k)
            if u == SAMPLE_AT and k == 0:
                x += self.spoll_issue()
            if early and u == CHECK_AT:
                x += self.sp_load(2 * k) + self.sp_load(2 * k + 1)
            if early and u in (CHECK_AT + 1, CHECK_AT + 2):
                x += self.sp_load(8 + 4 * (u - CHECK_AT - 1) + k)
            if not early and u == 44 and k == 0:
                x += [self.VM(f'buffer_load_dword v15, v14, {srd(SRD_WS)}, s{sKB} offen sc1', 'spoll')]
            if u == 39 and k < 3:
                x += self.selectors()[4 * k:4 * k + 4]
            if u == 38 and k == 0:
                x += [I(f's_lshl_b32 s{sT0}, s{sW}, 12'), I(f'v_add_u32 v17, s{sT0}, v{vL16}')]
            if u == 38 and k == 1:
                x += [I('v_mov_b32 v16, 0x3f80')]
            done = [(tt, qb) for tt in range(4) for qb in range(4) if 4 * (46 - NTM) + NTM * (tt + 1) < n and (tt, qb) not in self.redone]
            for tt, qb in done[:2 if NTM < 4 else 1]:
                self.redone.add((tt, qb))
                x += self.red_write(tt, qb)
            if k == 3 and issue45(u + 1):
                x += self.dma45_setup(issue45(u + 1)[0])
            fx[g0 + 2] = x
            if k == 1:
                fx[g0 + 3] = [self.wait(lg=('a45', n + 2))]
            if k == 3 and u + 1 < NU:
                tag = ('u45', u + 2 if u < 44 - NTM else 45)
                fx[g0 + 3] = [self.wait(vm=tag if u <= 44 - NTM else None, lg=('a45', n + 2))]
                if u == 35:
                    fx[g0 + 3].append(I('s_barrier'))
                for hf in range(2):
                    cnt = self.vm.count(('sst', hf))
                    late = hf == 1 and u == FLAG1_AT
                    if cnt == 8 and hf not in self.flagged and (late or self.after(self.vm, ('sst', hf)) > self.after(self.vm, tag)):
                        self.flagged.add(hf)
                        fx[g0 + 3] += [self.wait(vm=('sst', hf))] if late else []
                        fx[g0 + 3] += self.stamp_items('flag%d' % hf) + [I(f'v_mov_b32 v{vTMP}, 1'),
                                       self.VM(f'buffer_store_dword v{vTMP}, off, {srd(SRD_WS)}, s{sFLAG} offset:{128 * hf} sc1', 'flag')]

    def gemm45(self):
        p = self.p
        self.stamp('P4')
        self.flagged = set()
        self.redone = set()
        mf, fx = [], {}
        for m in range(32):
            if m in (4, 8, 12, 16, 20, 24, 28):
                p.add(fill(mf, fx))
                mf, fx = [], {}
                self.stamp('P4b' if m == 16 else 'P4_%d' % m)
            self.unit45(m, mf, fx, False)
        p.add(fill(mf, fx))
        mf, fx = [], {}
        self.stamp('P5_32')
        for m in range(32, CHECK_AT):
            if m == 37:
                p.add(fill(mf, fx))
                mf, fx = [], {}
                self.stamp('P5_37')
            self.unit45(m, mf, fx, False)
        p.add(fill(mf, fx))
        p.add(self.wait(vm='spoll'))
        self.stamp('poll')
        p.e('v_cmp_ne_u32 vcc, 1, v15\ns_cbranch_vccnz L_late')
        state = (list(self.vm), list(self.lg), set(self.flagged), self.nstamp, list(self.names))
        for early in (True, False):
            self.vm, self.lg, self.flagged, self.nstamp, self.names = list(state[0]), list(state[1]), set(state[2]), state[3], list(state[4])
            if not early:
                p.e('L_late:')
            skip = early != self.trace_even
            if skip:
                p.mark('off')
            mf, fx = [], {}
            self.redone = set()
            for m in range(CHECK_AT, 46):
                self.unit45(m, mf, fx, early)
            assert self.flagged == {0, 1}
            p.add(fill(mf, fx))
            self.final(early)
            if self.prof:
                self.profile_out()
            p.e('s_endpgm')
            if skip:
                p.mark('on')

    def spoll_issue(self):
        return [I(f's_lshl_b32 s{sT3}, s{sRB}, 3'), I(f's_add_u32 s{sT3}, s{sT3}, s{sCB}'), I(f's_lshl_b32 s{sKB}, s{sT3}, 7'),
                I(f's_add_u32 s{sKB}, s{sKB}, {FOFF}'), I(f'v_and_b32 v14, 7, v{vLANE}'), I('v_lshlrev_b32 v14, 2, v14'),
                I(f's_lshl_b32 s{sH0}, s{sT3}, 16'), I(f's_lshl_b32 s{sT3}, s{sW}, 11'), I(f's_add_u32 s{sH0}, s{sH0}, s{sT3}'),
                I(f's_add_u32 s{sH0}, s{sH0}, {SOFF}'),
                self.VM(f'buffer_load_dword v15, v14, {srd(SRD_WS)}, s{sKB} offen sc1', 'spoll')]

    def spoll_spin(self):
        self.p.e(f'''s_mov_b32 s{sT2}, 0x200000
        L_sp_spin:
        s_waitcnt vmcnt(0)
        v_cmp_ne_u32 vcc, 1, v15
        s_cbranch_vccz L_sp_ok''')
        self.p.mark('off2')
        self.p.e(f'''buffer_load_dword v15, v14, {srd(SRD_WS)}, s{sKB} offen sc1
        s_sub_u32 s{sT2}, s{sT2}, 1
        s_cbranch_scc0 L_sp_spin
        s_waitcnt vmcnt(0)''')
        self.p.mark('on2')
        self.p.e('L_sp_ok:')

    def sp_load(self, k):
        g, half = k >> 1, k & 1
        r = vSP(k)
        out = [I(f's_add_u32 s{sH0}, s{sH0}, 8192')] if (half == 0 and g) else []
        return out + [self.VM(f'buffer_load_dwordx4 {v(r, 4)}, v{vL16}, {srd(SRD_WS)}, s{sH0} offen offset:{1024 * half} sc1', ('sp', g))]

    def acc5(self, t, qb):
        return 32 + (t * 4 + qb) * 4

    def s_convert(self, k):
        cbh, qb, half = k >> 3, (k >> 1) & 3, k & 1
        x = vACC + ((4 * cbh + 2 * half) * 4 + qb) * 4
        y = x + 16
        t = 120 + 4 * (k & 1)
        return [I(f'v_cvt_pk_bf16_f32 v{t}, v{x}, v{x + 1}'), I(f'v_cvt_pk_bf16_f32 v{t + 1}, v{x + 2}, v{x + 3}'),
                I(f'v_cvt_pk_bf16_f32 v{t + 2}, v{y}, v{y + 1}'), I(f'v_cvt_pk_bf16_f32 v{t + 3}, v{y + 2}, v{y + 3}')]

    def s_store(self, k):
        cbh, qb, half = k >> 3, (k >> 1) & 3, k & 1
        out = []
        if k == 0:
            out += [I(f's_lshl_b32 s{sH1}, s{sR}, 19'), I(f's_lshl_b32 s{sT0}, s{sW}, 17'), I(f's_lshl_b32 s{sT1}, s{sG}, 13'),
                    I(f's_add_u32 s{sH1}, s{sH1}, s{sT0}'), I(f's_add_u32 s{sH1}, s{sH1}, s{sT1}'), I(f's_add_u32 s{sH1}, s{sH1}, {SOFF}')]
        elif k % 4 == 0:
            out += [I(f's_add_u32 s{sH1}, s{sH1}, {4096 if k % 8 else 65536 - 4096}')]
        out.append(self.VM(f'buffer_store_dwordx4 {v(120 + 4 * (k & 1), 4)}, v{vL16}, {srd(SRD_WS)}, s{sH1} offen offset:{(qb & 1) * 2048 + half * 1024} sc1', ('sst', cbh)))
        return out

    def final_loads(self, t):
        dst = v(24 + 2 * t, 2) if t < 2 else a_(244 + 2 * (t - 2), 2)
        return [self.VM(f'buffer_load_dwordx2 {dst}, v{vTMP + 1}, {srd(SRD_X)}, s{sXO} offen offset:{32 * t}', 'xres')]

    def selectors(self):
        return [I(f'v_bfe_u32 v120, v{vLANE}, 2, 2'), I(f'v_lshrrev_b32 v121, 4, v{vLANE}'), I(f'v_and_b32 v124, 1, v{vLANE}'),
                I('v_cmp_eq_u32 vcc, v120, v121'),
                I('v_lshlrev_b32 v124, 4, v124'), I(f'v_and_b32 v125, 2, v{vLANE}'), I('v_lshlrev_b32 v124, v124, v16'),
                I('v_cndmask_b32 v124, 0, v124, vcc'),
                I('v_cmp_eq_u32 vcc, 0, v125'), I('v_mov_b32 v120, 0'), I('v_mov_b32 v121, 0'), I('v_cndmask_b32 v122, 0, v124, vcc')]

    def red_write(self, t, qb):
        o = qb * 16384 + t * 1024
        return [self.LG(f'ds_write_b128 v17, {v(self.acc5(t, qb), 4)} offset:{o}', 'redw', tag='red',
                        lds_w=lambda w, tr: [(o + w * 4096, o + w * 4096 + 1024)])]

    def final(self, early):
        p, e = self.p, self.p.e
        self.stamp('P6')
        S, X, F, T = 192, 208, 32, 48
        lo, hi = v(122, 4), v(120, 4)
        e(f'''v_sub_u32 v123, v124, v122
        v_mov_b32 v124, 0
        v_mov_b32 v125, 0
        s_lshl_b32 s{sT0}, s{sW}, 14
        v_add_u32 v18, s{sT0}, v{vL16}''')
        mx, ms = [], []
        for half in range(2):
            for tt in range(2):
                mx.append(I(f'v_mfma_f32_16x16x32_bf16 {v(X + 8 * half + 4 * tt, 4)}, {hi if tt else lo}, {a_(244, 4) if half else v(24, 4)}, 0'))
        for g in range(8):
            for half in range(2):
                for tt in range(2):
                    d = v(S + 8 * half + 4 * tt, 4)
                    ms.append(I(f'v_mfma_f32_16x16x32_bf16 {d}, {hi if tt else lo}, {v(vSP(2 * g + half), 4)}, {d if g else 0}'))
        rest = [(tt, qb) for tt in range(4) for qb in range(4) if (tt, qb) not in self.redone]

        def reads():
            out = []
            for src in range(4):
                for t in range(4):
                    o = src * 4096 + t * 1024
                    out.append(self.LG(f'ds_read_b128 {v(32 + (src * 4 + t) * 4, 4)}, v18 offset:{o}', ('redr', src),
                                       lds_r=lambda w, tr, o=o: [(o + w * 16384, o + w * 16384 + 1024)]))
            return out

        def silu():
            e('s_waitcnt lgkmcnt(0)')
            for n in range(8):
                e(f'v_pk_add_f32 {v(32 + 2 * n, 2)}, {v(32 + 2 * n, 2)}, {v(48 + 2 * n, 2)}')
            for n in range(8):
                e(f'v_pk_add_f32 {v(64 + 2 * n, 2)}, {v(64 + 2 * n, 2)}, {v(80 + 2 * n, 2)}')
            e(f'v_mov_b32 v96, {f32(-math.log2(math.e))}')
            for n in range(8):
                e(f'v_pk_add_f32 {v(F + 2 * n, 2)}, {v(32 + 2 * n, 2)}, {v(64 + 2 * n, 2)}')
            for n in range(8):
                e(f'v_pk_mul_f32 {v(T + 2 * n, 2)}, {v(F + 2 * n, 2)}, {v(96, 2)} op_sel_hi:[1,0]')
            for n in range(16):
                e(f'v_exp_f32 v{T + n}, v{T + n}')
            e('s_nop 0')
            for n in range(8):
                e(f'v_pk_add_f32 {v(T + 2 * n, 2)}, {v(T + 2 * n, 2)}, 1.0 op_sel_hi:[1,0]')
            for n in range(16):
                e(f'v_rcp_f32 v{T + n}, v{T + n}')
            e('s_nop 0')
            for n in range(8):
                e(f'v_pk_mul_f32 {v(F + 2 * n, 2)}, {v(F + 2 * n, 2)}, {v(T + 2 * n, 2)}')

        if early:
            fx = {g: self.red_write(*x) for g, x in enumerate(rest)}
            for g in range(8):
                fx[3 + 4 * g] = fx.get(3 + 4 * g, []) + [self.wait(vm=('sp', g))]
            fx[16] = [I('s_waitcnt lgkmcnt(0)'), I('s_barrier')]
            rd = reads()
            for k, g in enumerate((17, 18, 20, 21, 22, 24, 25, 26)):
                fx[g] = rd[2 * k:2 * k + 2]
            p.add(fill(mx + ms, fx))
            self.stamp('ssum')
            silu()
        else:
            p.add(fill(mx, {g: self.red_write(*x) for g, x in enumerate(rest[:4])}))
            for x in rest[4:]:
                p.add(self.red_write(*x))
            e('s_waitcnt lgkmcnt(0)\ns_barrier')
            p.add(reads())
            silu()
            self.spoll_spin()
            self.stamp('ssum')
            for k in range(16):
                p.add(self.sp_load(k))
            for g in range(8):
                p.add(self.wait(vm=('sp', g)))
                p.add(ms[4 * g:4 * g + 4])
            e('s_nop 4')
        for t in range(4):
            for n in (2 * t, 2 * t + 1):
                e(f'v_pk_fma_f32 {v(S + 2 * n, 2)}, {v(S + 2 * n, 2)}, {v(F + 2 * n, 2)}, {v(X + 2 * n, 2)}')
            for n in (2 * t, 2 * t + 1):
                e(f'v_cvt_pk_bf16_f32 v{96 + n}, v{S + 2 * n}, v{S + 2 * n + 1}')
            p.add(self.VM(f'buffer_store_dwordx2 {v(96 + 2 * t, 2)}, v{vTMP + 1}, {srd(SRD_OUT)}, s{sXO} offen offset:{32 * t}', 'out'))

    def fallback(self):
        p, e = self.p, self.p.e
        p.mark('off')
        e(f'''L_fallback:
        s_mov_b32 s{sMODE}, 1
        s_waitcnt vmcnt(0) lgkmcnt(0)
        s_barrier
        v_and_b32 v10, 15, v{vLANE}
        v_lshrrev_b32 v11, 4, v{vLANE}
        v_lshlrev_b32 v11, 4, v11
        v_lshl_or_b32 v10, v10, 8, v11
        s_mov_b32 s{sSO}, 0''')
        for q in range(4):
            e(f'v_mov_b32 v{vMINIT + q}, 0xff800000')
        e('L_maxloop:')
        for ks in range(4):
            e(f'buffer_load_dwordx4 {v(160 + 4 * ks, 4)}, v10, {srd(SRD_K)}, s{sSO} offen offset:{64 * ks}')
        e('s_waitcnt vmcnt(0)')
        for ks in range(4):
            for qb in range(4):
                d = v(vS + 4 * qb, 4)
                e(f'v_mfma_f32_16x16x32_bf16 {d}, {v(160 + 4 * ks, 4)}, {v(vQ + (ks * 4 + qb) * 4, 4)}, {d if ks else 0}')
        e(f's_add_u32 s{sSO}, s{sSO}, 4096\ns_nop 7')
        for qb in range(4):
            s = vS + 4 * qb
            e(f'v_max3_f32 v{vMINIT + qb}, v{s}, v{s + 1}, v{vMINIT + qb}\nv_max3_f32 v{vMINIT + qb}, v{s + 2}, v{s + 3}, v{vMINIT + qb}')
        e(f'''s_cmp_lt_u32 s{sSO}, 0x80000
        s_cbranch_scc1 L_maxloop
        v_accvgpr_read_b32 v{vKA}, a{aPARK + 2}
        v_accvgpr_read_b32 v{vVA}, a{aPARK + 1}
        s_lshl_b32 s{sKB}, s{sW}, 12
        s_add_u32 s{sKA}, s{sKB}, {(2048 - 32) * 256}
        s_and_b32 s{sKA}, s{sKA}, 0x7ffff
        s_add_u32 s{sKB}, s{sKB}, {32 * 256}''')
        for t in range(1, 4):
            e(f'v_xor_b32 v{vKA + t}, {64 * t}, v{vKA}')
        for t in range(1, 8):
            e(f'v_xor_b32 v{vVA + t}, {32 * t}, v{vVA}')
        save = list(self.vm)
        for base, fn, c, so in ((3 * 16384, self.kdma, -1, sKA), (0, self.kdma, 0, sKB), (VBASE + 3 * 16384, self.vdma, 0, sKA),
                                (VBASE, self.vdma, 1, sKB), (16384, self.kdma, 1, sKA)):
            if (fn, c) == (self.kdma, 1):
                e(f's_add_u32 s{sKA}, s{sKB}, 16384')
            e(f's_add_u32 m0, s{sM0K}, {base}\ns_nop 0')
            for pc in range(4):
                p.add(fn(c, pc, so))
        self.vm = save
        e('s_waitcnt vmcnt(0)\ns_branch L_attn')
        p.mark('on')

    def profile_out(self):
        e = self.p.e
        self.stamp('End')
        e(f'''s_memrealtime s[72:73]
        s_lshl_b32 s{sT0}, s2, 2
        s_add_u32 s{sT0}, s{sT0}, s{sW}
        s_lshl_b32 s{sT0}, s{sT0}, 7
        s_add_u32 s{sT0}, s{sT0}, {28 << 20}
        s_waitcnt lgkmcnt(0)
        s_mov_b64 exec, 1''')
        if DBGOUT:
            e('s_not_b32 s26, s4\nv_mov_b32 v2, s26')
            e(f'buffer_atomic_umax v2, off, {srd(SRD_DBG)}, 0')
            for k in range(self.nstamp):
                e(f'v_mov_b32 v2, s{STAMP0 + k}\nbuffer_atomic_umax v2, off, {srd(SRD_DBG)}, 0 offset:{4 + 4 * k}')
            return
        for k, r in list(enumerate([100, 72] + [STAMP0 + k for k in range(self.nstamp)])) + [(30, 24), (31, 25)]:
            e(f'v_mov_b32 v2, s{r}\nbuffer_store_dword v2, off, {srd(SRD_WS)}, s{sT0} offset:{4 * k}')

    def build(self):
        self.setup()
        self.stamp('LN')
        self.layernorm()
        self.gemm12()
        self.attn_prologue()
        self.attention()
        self.o_epilogue()
        self.gemm45()
        self.fallback()
        self.p.e('L_end:')
        return self.p


HEADER = open(__file__.rsplit('/', 1)[0] + '/header.txt' if '/' in __file__ else 'header.txt').read()


def render(prog):
    k = NAME + '_kernel'
    return HEADER + f'''; @launch grid=(256,1,1) block=(256,1,1) lds=163840
.amdgcn_target "amdgcn-amd-amdhsa--gfx950"
.text
.globl {k}
.p2align 8
.type {k},@function
{k}:
''' + prog.text() + f''' s_endpgm
.section .rodata,"a"
.p2align 6
.amdhsa_kernel {k}
  .amdhsa_next_free_vgpr 512
  .amdhsa_next_free_sgpr 102
  .amdhsa_accum_offset 256
  .amdhsa_group_segment_fixed_size 0
  .amdhsa_kernarg_size 96
  .amdhsa_user_sgpr_count 2
  .amdhsa_user_sgpr_kernarg_segment_ptr 1
  .amdhsa_system_sgpr_workgroup_id_x 1
.end_amdhsa_kernel
'''


if __name__ == '__main__':
    prof = '--prof' in sys.argv
    if '--only' in sys.argv:
        ONLY = sys.argv[sys.argv.index('--only') + 1].split(',') + ['End']
        sys.argv.remove(sys.argv[sys.argv.index('--only') + 1])
    if '--ln' in sys.argv:
        LNSTART, LNEVERY = map(int, sys.argv[sys.argv.index('--ln') + 1].split(','))
        sys.argv.remove(sys.argv[sys.argv.index('--ln') + 1])
    if '--abl' in sys.argv:
        ABL = set(sys.argv[sys.argv.index('--abl') + 1].split(','))
        sys.argv.remove(sys.argv[sys.argv.index('--abl') + 1])
    RT = '--rt' in sys.argv
    if '--spread' in sys.argv:
        SPREAD = int(sys.argv[sys.argv.index('--spread') + 1])
        sys.argv.remove(sys.argv[sys.argv.index('--spread') + 1])
    for kv in [x[2:] for x in sys.argv if x.startswith('-D')]:
        globals()[kv.split('=')[0]] = int(kv.split('=')[1])
    GROUPS45 = [(m, t) for m in range(46 - NTM) for t in range(4)] + [(m, t) for t in range(4) for m in range(46 - NTM, 46)]
    if '--g1' in sys.argv:
        GX = 1
    out = [a for a in sys.argv[1:] if not a.startswith('-')][0]
    other = Gen(prof=prof, trace_even=True).build()
    errs = check(other.trace())
    g = Gen(prof=prof)
    prog = g.build()
    assert other.text() == prog.text()
    tr = prog.trace()
    errs += check(tr)
    for x in errs[:0 if ABL else 40]:
        print('ERR', x)
    print(len(errs), 'checker findings')
    marks = cycles(tr)
    prev = ('start', 0)
    for m in marks:
        print('%-6s %7d' % (prev[0], m[1] - prev[1]))
        prev = m
    print('total issue-model cycles', marks[-1][1])
    open(out, 'w').write(render(prog) + ('; stamps' + ('(rt)' if RT else '') + ': ' + ' '.join(g.names) + '\n' if prof else ''))
```
